```python
import torch

def _softmax(x, axis=-1):
    return torch.softmax(x, dim=axis)
def _gelu(x):
    return torch.nn.functional.gelu(x, approximate="tanh")
def _silu(x):
    return torch.nn.functional.silu(x)
def _sigmoid(x):
    return torch.sigmoid(x)
def _layernorm(x, axis=-1, eps=1e-5):
    m = x.mean(dim=axis, keepdim=True)
    v = x.var(dim=axis, keepdim=True, unbiased=False)
    return (x - m) / torch.sqrt(v + eps)
def _scatter_add(tgt, idx, src, axis=0):
    return tgt.clone().index_add_(axis, idx, src)
def _segment_sum(src, seg, n):
    out = torch.zeros((n,) + src.shape[1:], dtype=src.dtype)
    return out.index_add_(0, seg, src)
def _pad(x, pw):
    flat = tuple(v for pair in reversed(pw) for v in pair)
    return torch.nn.functional.pad(x, flat)

kernel_name = 'recurrent_scan__sliding_block_cached__dense_activation_silu__decode'

def setup_inputs():

    _w = (lambda a: (lambda t: t.to(torch.bfloat16) if t.is_floating_point() else t)(torch.as_tensor(a)))
    def _A_setup():
        B, Sq, D = 4, 1, 576
        Hq, Hkv, Sk, Dh = 32, 16, 4096, 128
        assert Hq % Hkv == 0, (Hq, Hkv)
        return {
            "x": _w((lambda *s: torch.randn(*s, dtype=torch.bfloat16) * 0.1)(B, Sq, D)),
            "k_cache": _w((lambda *s: torch.randn(*s, dtype=torch.bfloat16) * 0.8)(B, Hkv, Sk, Dh)),
            "v_cache": _w((lambda *s: torch.randn(*s, dtype=torch.bfloat16) * 3.2)(B, Hkv, Sk, Dh)),
            "wq": _w((lambda *s: torch.randn(*s, dtype=torch.bfloat16) * 0.8)(D, Hq * Dh) * (D ** -0.5)),
            "wo": _w((lambda *s: torch.randn(*s, dtype=torch.bfloat16) * 3.2)(Hq * Dh, D) * ((Hq * Dh) ** -0.5)),
        }
    _A_in = _A_setup()

    def _B_setup():
        B, S, D, F = 4, 1, 576, 4608
        return {
            "x": _w((lambda *s: torch.randn(*s, dtype=torch.bfloat16) * 0.1)(B, S, D)),
            "w1": _w((lambda *s: torch.randn(*s, dtype=torch.bfloat16) * 3.2)(D, F) * (D ** -0.5)),
            "w2": _w((lambda *s: torch.randn(*s, dtype=torch.bfloat16) * 3.2)(F, D) * (F ** -0.5)),
        }
    _B_in = _B_setup()

    return {
        "A_x": _A_in["x"],
        "A_k_cache": _A_in["k_cache"],
        "A_v_cache": _A_in["v_cache"],
        "A_wq": _A_in["wq"],
        "A_wo": _A_in["wo"],
        "B_x": _B_in["x"],
        "B_w1": _B_in["w1"],
        "B_w2": _B_in["w2"],
    }

def reference(A_x, A_k_cache, A_v_cache, A_wq, A_wo, B_x, B_w1, B_w2):
    def _A_ref(x, k_cache, v_cache, wq, wo):
        B, Sq, D = x.shape
        Hq, Dh = 32, 128
        Hkv, Sk = k_cache.shape[1], k_cache.shape[2]
        W = min(4096, max(256, Sk // 4))
        rep = Hq // Hkv
        q = (lambda x, *d: x.permute(*d))((x @ wq).reshape(B, Sq, Hq, Dh), 0, 2, 1, 3)
        k = (lambda x, n, axis: torch.repeat_interleave(x, n, dim=axis))(k_cache[:, :, Sk - W:, :], rep, axis=1)
        v = (lambda x, n, axis: torch.repeat_interleave(x, n, dim=axis))(v_cache[:, :, Sk - W:, :], rep, axis=1)
        scores = torch.einsum("bhqd,bhkd->bhqk", q, k) * (Dh ** -0.5)
        p = _softmax(scores, axis=-1)
        o = torch.einsum("bhqk,bhkd->bhqd", p, v)
        return (lambda x, *d: x.permute(*d))(o, 0, 2, 1, 3).reshape(B, Sq, Hq * Dh) @ wo

    def _B_ref(x, w1, w2):
        h = torch.einsum("bsd,df->bsf", x, w1)
        h = _silu(h)
        out = torch.einsum("bsf,fd->bsd", h, w2)
        return out

    x = A_x
    xn = _layernorm(x, axis=-1)
    s = _A_ref(xn, A_k_cache, A_v_cache, A_wq, A_wo)
    g = _silu(_B_ref(xn, B_w1, B_w2))
    return x + s * g
```

```python
import re
TRANS = ("v_exp_f32", "v_log_f32", "v_rcp_f32", "v_rsq_f32", "v_sqrt_f32", "v_sin_f32", "v_cos_f32")
def regs(tok, kind):
    tok = tok.strip()
    tok = re.sub(r"^-|^abs\(|\)$|^\||\|$", "", tok)
    m = re.fullmatch(kind + r"(\d+)", tok)
    if m: return {int(m.group(1))}
    m = re.fullmatch(kind + r"\[(\d+):(\d+)\]", tok)
    if m: return set(range(int(m.group(1)), int(m.group(2)) + 1))
    return set()
class Ins:
    def __init__(s, text):
        s.text = text
        t = text.split(";")[0].strip()
        s.label = t.endswith(":")
        s.directive = t.startswith(".") or t == ""
        s.op = t.split()[0] if t else ""
        rest = t[len(s.op):].strip()
        rest = re.sub(r"\s+[a-z_]+:\[[^\]]*\]", "", rest)
        ops = [o.strip() for o in rest.split(",")] if rest else []
        if ops: ops[-1] = ops[-1].split()[0] if ops[-1] else ops[-1]
        s.ops = ops
        op = s.op
        s.mfma = op.startswith("v_mfma")
        s.valu = op.startswith("v_") and not s.mfma
        s.trans = any(op.startswith(x) for x in TRANS)
        s.dpp = "_dpp" in op or "row_" in t or "quad_perm" in t
        s.perml = op.startswith("v_permlane")
        s.vmem = op.startswith(("global_", "buffer_", "flat_"))
        s.ds = op.startswith("ds_")
        s.salu = op.startswith("s_")
        s.ldsdma = s.vmem and (" lds" in t or "_lds_" in op)
        s.vw = set(); s.vr = set(); s.sw = set(); s.sr = set(); s.srcc = set(); s.wide_store = set()
        V = lambda x: regs(x, "v"); S = lambda x: regs(x, "s") | ({"vcc"} if x.strip() in ("vcc", "vcc_lo", "vcc_hi") else set())
        if s.mfma:
            s.vw = V(ops[0]); s.vr = V(ops[1]) | V(ops[2]) | V(ops[3]); s.srcc = V(ops[3]); s.ab = V(ops[1]) | V(ops[2])
        elif s.valu:
            if op.startswith("v_cmp"):
                s.sw = S(ops[0]); srcs = ops[1:]
            elif op.startswith(("v_readfirstlane", "v_readlane")):
                s.sw = S(ops[0]); srcs = ops[1:]
            elif s.perml:
                s.vw = V(ops[0]) | V(ops[1]); srcs = ops
            elif "_co_" in op:
                s.vw = V(ops[0]); s.sw = S(ops[1]); srcs = ops[2:]
            else:
                s.vw = V(ops[0]); srcs = ops[1:]
                if op.startswith(("v_fmac", "v_dot2c", "v_pk_fmac")) or s.dpp or "sdwa" in op: srcs = ops
            for x in srcs: s.vr |= V(x); s.sr |= S(x)
        elif s.vmem:
            if "load" in op and not s.ldsdma:
                s.vw = V(ops[0]); srcs = ops[1:]
            else: srcs = ops
            for x in srcs: s.vr |= V(x); s.sr |= S(x)
            if "store" in op and ("x4" in op or "x3" in op):
                for x in ops:
                    if len(V(x)) >= 3: s.wide_store = V(x)
        elif s.ds:
            if "read" in op: s.vw = V(ops[0]); srcs = ops[1:]
            else: srcs = ops
            for x in srcs: s.vr |= V(x)
        s.m0w = s.salu and ops and ops[0] == "m0"
        s.states = 0 if (s.label or s.directive) else (int(ops[0]) + 1 if op == "s_nop" else 1)
def need(p, c):
    n = 0
    if p.valu:
        if c.mfma and p.vw & c.vr: n = max(n, 2)
        if c.perml and p.vw & c.vr: n = max(n, 2)
        if c.valu and c.dpp and p.vw & c.vr: n = max(n, 2)
        if c.op.startswith(("v_readfirstlane", "v_readlane")) and p.vw & c.vr: n = max(n, 1)
        if p.trans and c.valu and p.vw & c.vr: n = max(n, 1)
        if p.trans and (c.vmem or c.ds) and p.vw & c.vr: n = max(n, 1)
        if p.sw and c.valu and (p.sw & c.sr or ("vcc" in p.sw and c.op.startswith("v_cndmask"))): n = max(n, 2)
        if p.sw and c.vmem and p.sw & c.sr: n = max(n, 5)
        if p.op.startswith("v_dot") and (c.valu or c.mfma or c.vmem or c.ds) and p.vw & (c.vr | c.vw):
            same_acc = c.op == p.op and not (p.vw & (regs(c.ops[1], "v") | regs(c.ops[2], "v")))
            if not same_acc: n = max(n, 3)
        if "sdwa" in p.op and c.valu and p.vw & (c.vr | c.vw): n = max(n, 1)
    if p.mfma:
        if c.mfma:
            if p.vw & c.ab: n = max(n, 8)
            elif p.vw & c.srcc and (p.vw != c.srcc or p.op != c.op): n = max(n, 6)
            elif p.vw & c.vw and not (p.vw & c.srcc): n = max(n, 8)
        elif (c.valu or c.vmem or c.ds) and p.vw & (c.vr | c.vw): n = max(n, 8)
        if c.valu and p.srcc & c.vw: n = max(n, 3)
    if p.wide_store and (c.valu or c.mfma or c.vmem or c.ds) and p.wide_store & c.vw: n = max(n, 2)
    if p.m0w and c.ldsdma: n = max(n, 1)
    return n
def pad(lines):
    out = []
    for t in lines:
        c = Ins(t)
        if not (c.label or c.directive):
            dist = 0; want = 0
            for p in reversed(out):
                if dist >= 9: break
                if p.op in ("s_branch", "s_endpgm"): break
                if not (p.label or p.directive):
                    want = max(want, need(p, c) - dist)
                dist += p.states
            if want > 0: out.append(Ins(f"s_nop {want - 1}"))
        out.append(c)
    return [i.text for i in out]
```

```python
import sys, struct
sys.path.insert(0, "gen")
from asmlib import pad
NAME = "recurrent_scan__sliding_block_cached__dense_activation_silu__decode"
KN = NAME + "_kernel"
def f2u(x): return struct.unpack("<I", struct.pack("<f", x))[0]
XN, ACT, QL, MX, LS, OW, S1T, S4T, LDS_END = 0, 1600, 3200, 3776, 3840, 3904, 12096, 53568, 95040
PITCH = 400
EPOCH, X1, OX, FX = 0, 4096, 593920, 888832
STAMP = 0x8000000
LOG2E = 1.4426950408889634
HEADER = open(f"cdna_kernels/{NAME}.s.ref").read().split("; Override launch")[0]

def gen(stamps=False, thr=2, opoll=2, prefetch=True, spin=1 << 15):
    L = []; e = L.append
    nst = [0]
    def stamp(i):
        if stamps: e(f"s_memrealtime s[{64+2*i}:{65+2*i}]")
    def dump():
        if not stamps: return
        e("s_waitcnt lgkmcnt(0)")
        e("s_mov_b64 exec, -1")
        e("s_mul_i32 s50, s2, 9"); e("s_add_u32 s50, s50, s3"); e("s_lshl_b32 s50, s50, 6"); e(f"s_add_u32 s50, s50, {STAMP}")
        e("v_mov_b32 v9, s50")
        for i in range(16):
            e(f"v_mov_b32 v10, s{64+2*i}"); e(f"global_store_dword v9, v10, s[26:27] offset:{4*i}")
    def tags():
        e("s_add_u32 s48, s48, 0x01010101")
        e("s_and_b32 s44, s48, 0xff"); e("s_bfe_u32 s45, s48, 0x80008"); e("s_bfe_u32 s46, s48, 0x80010"); e("s_lshr_b32 s47, s48, 24")
    def wtile(vT, tbase, vA, abase, vSt, lab, skip_last=False):
        for s in range(4):
            e(f"ds_read_b64_tr_b16 v[{80+4*s}:{81+4*s}], v{vT} offset:{tbase + (2*s)*4608}")
            e(f"ds_read_b64_tr_b16 v[{82+4*s}:{83+4*s}], v{vT} offset:{tbase + (2*s+1)*4608}")
            e(f"ds_read_b128 v[{100+4*s}:{103+4*s}], v{vA} offset:{abase + 64*s}")
        e(f"ds_read_b64_tr_b16 v[96:97], v{vT} offset:{tbase + 8*4608}")
        e(f"ds_read_b64 v[116:117], v{vA} offset:{abase + 256}")
        for s in range(4):
            e(f"s_waitcnt lgkmcnt({11 - 3*s})")
            e(f"v_mfma_f32_16x16x32_bf16 v[120:123], v[{80+4*s}:{83+4*s}], v[{100+4*s}:{103+4*s}], " + ("0" if s == 0 else "v[120:123]"))
        e("s_waitcnt lgkmcnt(0)")
        if skip_last:
            e("s_cmp_lg_u32 s6, 0"); e(f"s_cbranch_scc1 {lab}")
        e("v_mfma_f32_16x16x32_bf16 v[120:123], v[96:99], v[116:119], v[120:123]")
        if skip_last: e(f"{lab}:")
        e("s_mov_b32 exec_lo, 0x000f000f"); e("s_mov_b32 exec_hi, 0x000f000f")
        e("s_nop 6")
        for r in range(4): e(f"v_bfi_b32 v{120+r}, v11, s{44+r}, v{120+r}")
        e(f"global_store_dwordx4 v{vSt}, v[120:123], s[26:27] sc1")
        e("s_mov_b64 exec, -1")
    def untag(base, n, acc):
        for g in range(n):
            for r in range(4): e(f"v_xor_b32 v{base+4*g+r}, s{44+r}, v{base+4*g+r}")
        regs = list(range(base, base + 4*n))
        e(f"v_or3_b32 v{acc}, v{regs[0]}, v{regs[1]}, v{regs[2]}")
        regs = regs[3:]
        while len(regs) >= 2:
            e(f"v_or3_b32 v{acc}, v{acc}, v{regs[0]}, v{regs[1]}"); regs = regs[2:]
        if regs: e(f"v_or_b32 v{acc}, v{acc}, v{regs[0]}")
    def poll_end(acc, top, out):
        e(f"v_and_b32 v{acc}, v11, v{acc}")
        e(f"v_cmp_ne_u32 vcc, 0, v{acc}")
        e(f"s_cbranch_vccz {out}")
        e("s_sub_u32 s49, s49, 1"); e(f"s_cbranch_scc0 {top}")
        e("s_mov_b32 s49, 0")
        e(f"{out}:")
    def rscat(b):
        e(f"v_permlane32_swap_b32 v{b}, v{b+2}"); e(f"v_permlane32_swap_b32 v{b+1}, v{b+3}")
        e(f"v_add_f32 v{b}, v{b}, v{b+2}"); e(f"v_add_f32 v{b+1}, v{b+1}, v{b+3}")
        e(f"v_permlane16_swap_b32 v{b}, v{b+1}")
        e(f"v_add_f32 v{b}, v{b}, v{b+1}")
    def allrows(op, v, t):
        e(f"v_mov_b32 v{t}, v{v}"); e(f"v_permlane32_swap_b32 v{t}, v{v}"); e(f"{op} v{v}, v{v}, v{t}")
        e(f"v_mov_b32 v{t}, v{v}"); e(f"v_permlane16_swap_b32 v{t}, v{v}"); e(f"{op} v{v}, v{v}, v{t}")

    e(f"{KN}:")
    stamp(0)
    e("s_load_dwordx16 s[8:23], s[0:1], 0")
    e("s_load_dwordx2 s[24:25], s[0:1], 64")
    e("s_load_dwordx2 s[26:27], s[0:1], 80")
    e("s_cmp_ge_u32 s2, 256"); e("s_cbranch_scc1 L_end")
    e("v_lshrrev_b32 v2, 6, v0"); e("v_and_b32 v1, 63, v0")
    e("v_readfirstlane_b32 s3, v2")
    e("s_and_b32 s4, s2, 15")
    e("s_lshr_b32 s5, s2, 4")
    e("s_lshr_b32 s6, s2, 7")
    e("s_bfe_u32 s29, s2, 0x10006")
    e("s_lshl_b32 s7, s4, 1"); e("s_add_u32 s7, s7, s29")
    e("s_and_b32 s28, s5, 3")
    e(f"s_mov_b32 s49, {spin}")
    e("v_mov_b32 v11, 0xff")
    e("v_mov_b32 v98, 0"); e("v_mov_b32 v99, 0"); e("v_mov_b32 v118, 0"); e("v_mov_b32 v119, 0")
    e("s_cmp_eq_u32 s3, 8"); e("s_cbranch_scc1 L_service")
    e("s_cmp_lg_u32 s6, 0")
    e("s_cselect_b32 s54, -1, 0xfffcffff"); e("s_cselect_b32 s55, 0x0030000c, 0"); e("s_or_b32 s55, s55, 0x000ffff3")
    e("s_add_u32 s51, s6, 8")
    e("s_lshl_b32 s50, s51, 10")
    e("s_mul_i32 s34, s51, 589824")
    e("s_lshl_b32 s51, s51, 5")
    e("s_mov_b32 s35, 0x20000")
    e("s_mul_i32 s51, s51, s7")
    e("s_mul_i32 s52, s28, 144"); e("s_mul_i32 s53, s3, 3"); e("s_add_u32 s52, s52, s53"); e("s_mul_i32 s52, s52, s50"); e("s_add_u32 s51, s51, s52")
    e("v_mul_u32_u24 v9, 57, v1"); e("v_lshrrev_b32 v9, 10, v9")
    e("v_mul_u32_u24 v10, 18, v9"); e("v_sub_u32 v10, v1, v10"); e("v_lshlrev_b32 v10, 4, v10")
    e("v_mad_u32_u24 v2, v9, s50, v10"); e("v_add_u32 v2, s51, v2")
    e("s_mul_i32 s56, s50, 24")
    e("s_mul_i32 s57, s3, 864"); e(f"s_add_u32 m0, s57, {S1T}")
    e("s_mov_b32 s58, 0")
    e("s_cmp_lg_u32 s6, 0")
    e("s_mov_b64 exec, s[54:55]")
    e("s_waitcnt lgkmcnt(0)")
    e("s_cselect_b64 s[32:33], s[20:21], s[14:15]")
    e("s_cselect_b64 s[36:37], s[16:17], s[22:23]")
    stamp(1)
    for t in range(6):
        e("buffer_load_dwordx4 v2, s[32:35], s58 offen nt lds")
        if t < 5:
            e("s_add_u32 m0, m0, 6912"); e("s_add_u32 s58, s58, s56")
    e("s_mov_b64 exec, -1")
    e(f"s_load_dword s48, s[26:27], {EPOCH}")
    e("s_lshr_b32 s50, s5, 2"); e("s_lshl_b32 s50, s50, 24"); e("s_lshl_b32 s51, s4, 20"); e("s_add_u32 s50, s50, s51")
    e("s_lshl_b32 s51, s28, 16"); e("s_add_u32 s50, s50, s51")
    e("s_xor_b32 s51, s5, s4"); e("s_xor_b32 s51, s51, s3"); e("s_lshl_b32 s51, s51, 12"); e("s_add_u32 s50, s50, s51")
    e("s_add_u32 s50, s50, 786432")
    e("v_lshl_add_u32 v5, v1, 4, s50")
    e("v_and_b32 v12, 3, v1"); e("v_bfe_u32 v13, v1, 2, 2"); e("v_lshrrev_b32 v14, 4, v1")
    e("v_lshl_add_u32 v4, v12, 10, s50"); e("v_lshl_add_u32 v4, v13, 8, v4"); e("v_lshl_add_u32 v4, v14, 4, v4")
    e("s_sub_u32 s59, 9, s6"); e("s_mul_i32 s59, s59, 18432")
    e("s_mul_i32 s51, s59, s7"); e("s_add_u32 s38, s51, s59"); e("s_mov_b32 s39, 0x20000")
    e("s_mul_i32 s52, s28, 288"); e("s_add_u32 s51, s51, s52"); e("s_mul_i32 s52, s3, 3456"); e("s_add_u32 s51, s51, s52")
    e("v_mul_u32_u24 v3, 1152, v9"); e("v_add3_u32 v3, v3, v10, s51")
    e(f"s_waitcnt vmcnt({thr})")
    for s in range(4): e(f"global_load_dwordx4 v[{16+4*s}:{19+4*s}], v4, s[10:11] offset:{64*s} nt")
    e("v_xor_b32 v4, 0x8000, v4")
    def tile_addrs():
        e("v_lshrrev_b32 v6, 2, v1"); e("v_mul_u32_u24 v6, 288, v6"); e("v_lshl_add_u32 v6, v12, 3, v6")
        e("s_lshl_b32 s50, s3, 5"); e("v_add_u32 v6, s50, v6")
        e(f"v_mul_u32_u24 v7, {PITCH}, v12"); e("v_lshl_add_u32 v7, v14, 4, v7")
        e("s_lshl_b32 s50, s6, 5"); e("s_add_u32 s50, s50, s7")
        e("s_mul_i32 s51, s50, 9216"); e("s_lshl_b32 s52, s3, 10"); e("s_add_u32 s51, s51, s52")
        e("s_lshl_b32 s52, s28, 8"); e("s_add_u32 s51, s51, s52"); e(f"s_add_u32 s51, s51, {X1}")
        e("v_lshlrev_b32 v8, 4, v14"); e("v_lshl_add_u32 v15, v12, 12, v8"); e("v_lshl_add_u32 v8, v12, 6, v8"); e("v_add_u32 v8, s51, v8")
        e("s_mul_i32 s51, s28, 9"); e("s_add_u32 s51, s51, s3"); e("s_lshl_b32 s51, s51, 14"); e("s_lshl_b32 s50, s50, 6")
        e("s_add_u32 s51, s51, s50"); e(f"s_add_u32 s51, s51, {FX}"); e("v_add_u32 v15, s51, v15")
    tile_addrs()
    e("s_waitcnt lgkmcnt(0)")
    tags()
    e("s_waitcnt vmcnt(4)")
    stamp(2)
    e("s_barrier")
    stamp(3)
    wtile(6, S1T, 7, XN, 8, "L_s1a")
    stamp(4)
    e(f"s_waitcnt vmcnt({thr+1})")
    for s in range(4): e(f"global_load_dwordx4 v[{32+4*s}:{35+4*s}], v4, s[10:11] offset:{64*s} nt")
    e("v_and_b32 v9, 1, v1"); e("v_lshlrev_b32 v9, 4, v9"); e("s_mov_b32 s50, 0xffff"); e("v_lshlrev_b32 v9, v9, s50")
    e("v_bfe_u32 v10, v1, 1, 2")
    for t in range(4):
        e(f"v_cmp_eq_u32 vcc, {t}, v10"); e(f"v_cndmask_b32 v{124+t}, 0, v9, vcc")
    e("v_bfe_u32 v10, v1, 3, 1")
    e("v_mul_u32_u24 v9, 272, v10"); e("v_lshl_add_u32 v9, v14, 4, v9")
    e("v_lshlrev_b32 v10, 5, v10")
    e("s_lshl_b32 s50, s3, 2"); e("v_add_u32 v13, s50, v10")
    e(f"s_waitcnt vmcnt({thr})")
    for r in range(4): e(f"global_load_dwordx4 v[{48+4*r}:{51+4*r}], v5, s[12:13] offset:{1024*r} nt")
    e("v_xor_b32 v5, 0x8000, v5")
    e(f"s_waitcnt vmcnt({thr})")
    for r in range(4): e(f"global_load_dwordx4 v[{64+4*r}:{67+4*r}], v5, s[12:13] offset:{1024*r} nt")
    if thr > 4: e("s_waitcnt vmcnt(8)")
    stamp(5)
    e("s_barrier")
    stamp(6)
    for s in range(4): e(f"ds_read_b128 v[{80+4*s}:{83+4*s}], v9 offset:{QL + 64*s}")
    for s in range(4):
        e(f"s_waitcnt lgkmcnt({3-s})")
        for t in range(2):
            e(f"v_mfma_f32_16x16x32_bf16 v[{100+4*t}:{103+4*t}], v[{16+16*t+4*s}:{19+16*t+4*s}], v[{80+4*s}:{83+4*s}], " + ("0" if s == 0 else f"v[{100+4*t}:{103+4*t}]"))
    e(f"s_mov_b32 s50, {hex(f2u(128 ** -0.5))}"); e("s_mov_b32 s51, 0xffff0000"); e(f"s_mov_b32 s52, {hex(f2u(LOG2E))}")
    e(f"s_add_u32 m0, s57, {S4T}"); e("s_mov_b32 s58, 0")
    for p in range(4): e(f"v_cvt_pk_bf16_f32 v{108+p}, v{100+2*p}, v{101+2*p}")
    for p in range(4):
        e(f"v_lshlrev_b32 v{100+2*p}, 16, v{108+p}"); e(f"v_and_b32 v{101+2*p}, s51, v{108+p}")
    for i in range(8): e(f"v_mul_f32 v{100+i}, s50, v{100+i}")
    for p in range(4): e(f"v_cvt_pk_bf16_f32 v{108+p}, v{100+2*p}, v{101+2*p}")
    for p in range(4):
        e(f"v_lshlrev_b32 v{100+2*p}, 16, v{108+p}"); e(f"v_and_b32 v{101+2*p}, s51, v{108+p}")
    e("v_max3_f32 v108, v100, v101, v102"); e("v_max3_f32 v109, v103, v104, v105"); e("v_max3_f32 v108, v108, v106, v107"); e("v_max_f32 v108, v108, v109")
    allrows("v_max_f32", 108, 109)
    e(f"ds_write_b32 v13, v108 offset:{MX}")
    def s4load(n):
        e("s_mov_b32 exec_hi, 0x003fffff")
        for t in range(n):
            e("buffer_load_dwordx4 v3, s[36:39], s58 offen nt lds")
            e("s_add_u32 m0, m0, 6912"); e("s_add_u32 s58, s58, 27648")
        e("s_mov_b32 exec_hi, -1")
    e("s_waitcnt lgkmcnt(0)")
    e("s_barrier")
    e(f"ds_read_b128 v[108:111], v10 offset:{MX}"); e(f"ds_read_b128 v[112:115], v10 offset:{MX+16}")
    s4load(3)
    e("s_waitcnt lgkmcnt(0)")
    e("v_max3_f32 v108, v108, v109, v110"); e("v_max3_f32 v112, v111, v112, v113"); e("v_max3_f32 v108, v108, v114, v115"); e("v_max_f32 v108, v108, v112")
    e("v_mul_f32 v109, s52, v108")
    for i in range(8): e(f"v_fma_f32 v{100+i}, v{100+i}, s52, -v109")
    for i in range(8): e(f"v_exp_f32 v{100+i}, v{100+i}")
    for i in range(8):
        e(f"v_cvt_pk_bf16_f32 v110, v{100+i}, v{100+i}")
        for t in range(4): e(f"v_and_b32 v{16+4*i+t}, v110, v{124+t}")
    e("v_add_f32 v100, v100, v101"); e("v_add_f32 v102, v102, v103"); e("v_add_f32 v104, v104, v105"); e("v_add_f32 v106, v106, v107")
    e("v_add_f32 v100, v100, v102"); e("v_add_f32 v104, v104, v106"); e("v_add_f32 v100, v100, v104")
    allrows("v_add_f32", 100, 101)
    e(f"ds_write_b32 v13, v100 offset:{LS}")
    e("s_lshl_b32 s50, s3, 10"); e("v_lshl_add_u32 v9, v1, 4, s50")
    stamp(7)
    e("s_waitcnt vmcnt(7)")
    for r in range(4): e(f"v_mfma_f32_16x16x32_bf16 v[120:123], v[{16+4*r}:{19+4*r}], v[{48+4*r}:{51+4*r}], " + ("0" if r == 0 else "v[120:123]"))
    e("s_waitcnt vmcnt(5)")
    s4load(3)
    for r in range(4):
        if r >= 2: e(f"s_waitcnt vmcnt({9-r})")
        e(f"v_mfma_f32_16x16x32_bf16 v[120:123], v[{32+4*r}:{35+4*r}], v[{64+4*r}:{67+4*r}], v[120:123]")
    stamp(8)
    e(f"ds_write_b128 v9, v[120:123] offset:{OW}")
    e("s_waitcnt lgkmcnt(0)")
    e("s_barrier")
    stamp(9)
    e(f"v_add_u32 v6, {S4T}, v6")
    e("s_cmp_eq_u32 s6, 0"); e("s_cbranch_scc1 L_nogather")
    e("s_lshr_b32 s50, s3, 1"); e("s_and_b32 s51, s3, 1")
    e("s_lshl_b32 s53, s4, 4"); e("s_lshl_b32 s54, s50, 2"); e("s_add_u32 s53, s53, s54"); e("s_mul_i32 s53, s53, 1152"); e(f"s_add_u32 s53, s53, {OX}")
    e("v_mul_u32_u24 v16, 1152, v14"); e("v_add_u32 v16, s53, v16")
    e("s_lshl_b32 s54, s29, 4"); e("v_add_u32 v17, s54, v16")
    e("s_lshl_b32 s54, s29, 9"); e("s_lshl_b32 s55, s51, 8"); e("s_add_u32 s54, s54, s55")
    e("v_and_b32 v18, 15, v1"); e("v_lshl_add_u32 v16, v18, 4, v16"); e("v_add_u32 v16, s54, v16")
    e(f"s_mul_i32 s50, s50, {PITCH}"); e("s_lshl_b32 s51, s51, 7"); e("s_add_u32 s50, s50, s51")
    e("v_bfe_u32 v19, v1, 3, 1"); e("v_lshl_add_u32 v18, v19, 6, s50"); e("v_lshl_add_u32 v18, v12, 4, v18")
    e("v_bfe_u32 v19, v1, 2, 1"); e("v_lshl_add_u32 v18, v19, 3, v18"); e("v_lshl_add_u32 v18, v14, 1, v18")
    e(f"s_waitcnt vmcnt({opoll})")
    e("L_opoll:")
    e("global_load_dwordx4 v[20:23], v16, s[26:27] sc1")
    e("global_load_dwordx4 v[24:27], v17, s[26:27] offset:1024 sc1")
    e("s_waitcnt vmcnt(0)")
    untag(20, 2, 28)
    poll_end(28, "L_opoll", "L_ogot")
    stamp(10)
    e("v_mov_b32 v28, v24")
    allrows("v_max_f32", 28, 29)
    e("v_sub_f32 v28, v24, v28"); e("v_mul_f32 v28, s52, v28"); e("v_exp_f32 v28, v28")
    e("v_mul_f32 v25, v25, v28")
    for r in range(4): e(f"v_mul_f32 v{20+r}, v{20+r}, v28")
    allrows("v_add_f32", 25, 29)
    rscat(20)
    e("v_rcp_f32 v25, v25")
    e("v_mul_f32 v20, v20, v25")
    e("v_cvt_pk_bf16_f32 v20, v20, v20")
    e(f"ds_write_b16 v18, v20 offset:{ACT}")
    e("L_nogather:")
    e("s_waitcnt vmcnt(0) lgkmcnt(0)")
    stamp(11)
    e("s_barrier")
    stamp(12)
    wtile(6, 0, 7, ACT, 15, "L_s4a", skip_last=True)
    stamp(13)
    dump()
    e("s_endpgm")

    e("L_service:")
    e("v_lshrrev_b32 v14, 4, v1"); e("v_and_b32 v12, 3, v1"); e("v_and_b32 v13, 15, v1")
    e("v_mul_u32_u24 v2, 1152, v14"); e("v_lshl_add_u32 v2, v13, 3, v2")
    e("s_mov_b32 s42, 4608"); e("s_mov_b32 s43, 0x20000"); e("s_mul_i32 s50, s28, 288")
    e("s_and_b32 s51, s2, 3"); e("s_mul_i32 s51, s51, 1152"); e("s_lshr_b32 s52, s2, 2"); e("s_lshl_b32 s52, s52, 5"); e("s_add_u32 s51, s51, s52")
    e("v_lshl_add_u32 v3, v12, 3, s51"); e("v_lshl_add_u32 v3, v14, 1, v3")
    if prefetch:
        e("s_getpc_b64 s[52:53]"); e("L_pc:")
        e(f"s_sub_u32 s52, s52, L_pc-{KN}"); e("s_subb_u32 s53, s53, 0")
        e("v_lshlrev_b32 v4, 7, v1")
        e(f"v_min_u32 v4, L_end-{KN}, v4")
        e("global_load_dword v5, v4, s[52:53]")
    e("s_waitcnt lgkmcnt(0)")
    e("s_mov_b64 s[40:41], s[8:9]")
    stamp(1)
    for i in range(9): e(f"buffer_load_dwordx2 v[{16+2*i}:{17+2*i}], v2, s[40:43], 0 offen offset:{128*i}")
    for i in range(3): e(f"buffer_load_dwordx2 v[{34+2*i}:{35+2*i}], v2, s[40:43], s50 offen offset:{128*i}")
    e("buffer_load_ushort v4, v3, s[40:43], 0 offen")
    e(f"s_load_dword s48, s[26:27], {EPOCH}")
    tile_addrs()
    e("s_mov_b32 s51, 0xffff0000")
    e(f"v_mul_u32_u24 v9, {PITCH}, v14"); e("v_bfe_u32 v10, v1, 3, 1"); e("v_lshl_add_u32 v9, v10, 6, v9"); e("v_lshl_add_u32 v9, v12, 4, v9")
    e("v_bfe_u32 v10, v1, 2, 1"); e("v_lshl_add_u32 v9, v10, 3, v9")
    e("s_waitcnt vmcnt(4)")
    stamp(2)
    for k in range(18):
        e(f"v_lshlrev_b32 v{40+2*k}, 16, v{16+k}"); e(f"v_and_b32 v{41+2*k}, s51, v{16+k}")
    e("v_pk_add_f32 v[76:77], v[40:41], v[42:43]"); e("v_pk_add_f32 v[78:79], v[44:45], v[46:47]")
    for k in range(4, 18): e(f"v_pk_add_f32 v[{76+2*(k&1)}:{77+2*(k&1)}], v[{76+2*(k&1)}:{77+2*(k&1)}], v[{40+2*k}:{41+2*k}]")
    def rowsum():
        e("v_pk_add_f32 v[76:77], v[76:77], v[78:79]"); e("v_add_f32 v76, v76, v77")
        for sh in (8, 4, 2, 1): e(f"v_add_f32_dpp v76, v76, v76 row_ror:{sh} row_mask:0xf bank_mask:0xf")
    rowsum()
    e(f"v_mul_f32 v16, {hex(f2u(-1.0/576))}, v76"); e("v_mov_b32 v17, v16")
    for k in range(18): e(f"v_pk_add_f32 v[{40+2*k}:{41+2*k}], v[{40+2*k}:{41+2*k}], v[16:17]")
    e("v_pk_mul_f32 v[76:77], v[40:41], v[40:41]"); e("v_pk_mul_f32 v[78:79], v[42:43], v[42:43]")
    for k in range(2, 18): e(f"v_pk_fma_f32 v[{76+2*(k&1)}:{77+2*(k&1)}], v[{40+2*k}:{41+2*k}], v[{40+2*k}:{41+2*k}], v[{76+2*(k&1)}:{77+2*(k&1)}]")
    rowsum()
    e(f"v_mul_f32 v18, {hex(f2u(1.0/576))}, v76")
    e("v_cvt_pk_bf16_f32 v18, v16, v18"); e("v_lshlrev_b32 v16, 16, v18"); e("v_and_b32 v18, s51, v18")
    e(f"v_add_f32 v18, {hex(f2u(1e-5))}, v18"); e("v_cvt_pk_bf16_f32 v18, v18, v18"); e("v_and_b32 v18, s51, v18")
    e("v_sqrt_f32 v18, v18"); e("v_mov_b32 v17, v16"); e("v_cvt_pk_bf16_f32 v18, v18, v18"); e("v_and_b32 v18, s51, v18")
    e("v_rcp_f32 v18, v18")
    e("s_waitcnt vmcnt(0) lgkmcnt(0)")
    tags()
    e("v_mov_b32 v19, v18")
    for k in range(6):
        e(f"v_lshlrev_b32 v{40+2*k}, 16, v{34+k}"); e(f"v_and_b32 v{41+2*k}, s51, v{34+k}")
    for k in range(6): e(f"v_pk_add_f32 v[{40+2*k}:{41+2*k}], v[{40+2*k}:{41+2*k}], v[16:17]")
    for k in range(6): e(f"v_cvt_pk_bf16_f32 v{34+k}, v{40+2*k}, v{41+2*k}")
    for k in range(6):
        e(f"v_lshlrev_b32 v{40+2*k}, 16, v{34+k}"); e(f"v_and_b32 v{41+2*k}, s51, v{34+k}")
    for k in range(6): e(f"v_pk_mul_f32 v[{40+2*k}:{41+2*k}], v[{40+2*k}:{41+2*k}], v[18:19]")
    for k in range(6): e(f"v_cvt_pk_bf16_f32 v{34+k}, v{40+2*k}, v{41+2*k}")
    for i in range(3): e(f"ds_write_b64 v9, v[{34+2*i}:{35+2*i}] offset:{XN + 128*i}")
    e("s_waitcnt lgkmcnt(0)")
    stamp(3)
    e("s_barrier")
    e("s_cmp_eq_u32 s6, 0"); e("s_cbranch_scc1 L_sv_nos1")
    wtile(6, S1T, 7, XN, 8, "L_s1b")
    e("L_sv_nos1:")
    e("s_mul_i32 s50, s4, 18432"); e("s_lshr_b32 s52, s5, 2"); e("s_lshl_b32 s52, s52, 6"); e("s_add_u32 s50, s50, s52"); e(f"s_add_u32 s50, s50, {X1}")
    e("v_bfe_u32 v10, v1, 2, 2")
    e("v_lshl_add_u32 v16, v10, 10, s50"); e("v_lshl_add_u32 v16, v14, 8, v16"); e("v_lshl_add_u32 v16, v12, 4, v16")
    e("v_add_u32 v17, 4096, v16"); e("v_add_u32 v18, 9216, v16"); e("v_add_u32 v19, 13312, v16")
    e("v_lshlrev_b32 v9, 3, v13"); e("v_lshl_add_u32 v9, v14, 1, v9")
    stamp(4)
    e("L_qpoll:")
    for i in range(4): e(f"global_load_dwordx4 v[{20+4*i}:{23+4*i}], v{16+i}, s[26:27] sc1")
    e("s_waitcnt vmcnt(0)")
    untag(20, 4, 36)
    poll_end(36, "L_qpoll", "L_qgot")
    stamp(5)
    e("s_add_u32 s50, s7, 32"); e("s_mul_i32 s50, s50, 9216"); e(f"s_add_u32 s50, s50, {X1}")
    e("v_lshl_add_u32 v16, v1, 4, s50"); e("v_add_u32 v17, 4096, v16"); e("v_add_u32 v18, 8192, v16")
    for i in range(4):
        rscat(20 + 4*i)
        e(f"v_cvt_pk_bf16_f32 v{20+4*i}, v{20+4*i}, v{20+4*i}")
        e(f"ds_write_b16 v9, v{20+4*i} offset:{QL + (i>>1)*272 + (i&1)*128}")
    e("s_waitcnt lgkmcnt(0)")
    stamp(6)
    e("s_barrier")
    e("s_barrier")
    e(f"s_mov_b32 s52, {hex(f2u(-LOG2E))}")
    e("s_cmp_lg_u32 s6, 0"); e("s_cbranch_scc1 L_noh")
    e(f"v_mul_u32_u24 v9, {PITCH}, v10"); e("v_lshl_add_u32 v9, v12, 4, v9"); e("v_lshl_add_u32 v9, v14, 1, v9")
    e("L_hpoll:")
    for i in range(9): e(f"global_load_dwordx4 v[{20+4*i}:{23+4*i}], v{16+(i>>2)}, s[26:27] offset:{1024*(i&3)} sc1")
    e("s_waitcnt vmcnt(0)")
    untag(20, 9, 56)
    poll_end(56, "L_hpoll", "L_hgot")
    for i in range(9): rscat(20 + 4*i)
    for i in range(9): e(f"v_cvt_pk_bf16_f32 v{20+4*i}, v{20+4*i}, v{20+4*i}")
    for i in range(9): e(f"v_and_b32 v{20+4*i}, s51, v{20+4*i}")
    for i in range(9): e(f"v_mul_f32 v{21+4*i}, s52, v{20+4*i}")
    for i in range(9): e(f"v_exp_f32 v{21+4*i}, v{21+4*i}")
    for i in range(9): e(f"v_add_f32 v{21+4*i}, 1.0, v{21+4*i}")
    for i in range(9): e(f"v_rcp_f32 v{21+4*i}, v{21+4*i}")
    for i in range(9): e(f"v_mul_f32 v{20+4*i}, v{20+4*i}, v{21+4*i}")
    for i in range(9): e(f"v_cvt_pk_bf16_f32 v{20+4*i}, v{20+4*i}, v{20+4*i}")
    for i in range(9): e(f"ds_write_b16 v9, v{20+4*i} offset:{ACT + (i>>1)*64 + (i&1)*8}")
    e("L_noh:")
    stamp(7)
    e("s_lshl_b32 s50, s4, 4"); e("s_add_u32 s50, s50, s5"); e("s_mul_i32 s50, s50, 1152"); e(f"s_add_u32 s50, s50, {OX}")
    e("v_lshrrev_b32 v10, 5, v1")
    e("v_lshl_add_u32 v17, v10, 4, s50")
    e("v_lshl_add_u32 v16, v10, 9, s50"); e("v_lshl_add_u32 v16, v13, 5, v16"); e("v_and_b32 v18, 16, v1"); e("v_add_u32 v16, v16, v18")
    e("v_lshlrev_b32 v10, 5, v10"); e("v_lshlrev_b32 v18, 4, v1")
    e(f"ds_read_b128 v[60:63], v10 offset:{MX}"); e(f"ds_read_b128 v[64:67], v10 offset:{MX+16}")
    e(f"v_add_u32 v6, {S4T}, v6")
    e("s_waitcnt lgkmcnt(0)")
    e("v_max3_f32 v60, v60, v61, v62"); e("v_max3_f32 v64, v63, v64, v65"); e("v_max3_f32 v60, v60, v66, v67"); e("v_max_f32 v60, v60, v64")
    e("v_bfi_b32 v62, v11, s46, v60"); e("v_bfi_b32 v60, v11, s44, v60")
    e("s_barrier")
    stamp(8)
    for w in range(8): e(f"ds_read_b128 v[{20+4*w}:{23+4*w}], v18 offset:{OW + 1024*w}")
    e(f"ds_read_b128 v[52:55], v10 offset:{LS}"); e(f"ds_read_b128 v[56:59], v10 offset:{LS+16}")
    for w in range(1, 8):
        e(f"s_waitcnt lgkmcnt({9-w})")
        e(f"v_pk_add_f32 v[20:21], v[20:21], v[{20+4*w}:{21+4*w}]"); e(f"v_pk_add_f32 v[22:23], v[22:23], v[{22+4*w}:{23+4*w}]")
    for r in range(4): e(f"v_bfi_b32 v{20+r}, v11, s{44+r}, v{20+r}")
    e("global_store_dwordx4 v16, v[20:23], s[26:27] sc1")
    e("s_waitcnt lgkmcnt(0)")
    e("v_pk_add_f32 v[52:53], v[52:53], v[54:55]"); e("v_pk_add_f32 v[56:57], v[56:57], v[58:59]"); e("v_pk_add_f32 v[52:53], v[52:53], v[56:57]"); e("v_add_f32 v52, v52, v53")
    e("v_bfi_b32 v61, v11, s45, v52"); e("v_bfi_b32 v63, v11, s47, v52")
    e("s_mov_b32 exec_lo, 1"); e("s_mov_b32 exec_hi, 1")
    e("global_store_dwordx4 v17, v[60:63], s[26:27] offset:1024 sc1")
    e("s_mov_b64 exec, -1")
    stamp(9)
    e("s_lshl_b32 s50, s2, 12"); e(f"s_add_u32 s50, s50, {FX}"); e("v_add_u32 v16, s50, v18")
    e("v_lshlrev_b32 v4, 16, v4")
    e("s_barrier")
    stamp(10)
    wtile(6, 0, 7, ACT, 15, "L_s4b", skip_last=True)
    stamp(11)
    e("s_cmp_ge_u32 s2, 144"); e("s_cbranch_scc1 L_fin")
    e("L_fpoll:")
    for i in range(4): e(f"global_load_dwordx4 v[{20+4*i}:{23+4*i}], v16, s[26:27] offset:{1024*i} sc1")
    e("s_waitcnt vmcnt(0)")
    untag(20, 4, 36)
    poll_end(36, "L_fpoll", "L_fgot")
    stamp(12)
    e("v_pk_add_f32 v[20:21], v[20:21], v[24:25]"); e("v_pk_add_f32 v[22:23], v[22:23], v[26:27]")
    e("v_pk_add_f32 v[28:29], v[28:29], v[32:33]"); e("v_pk_add_f32 v[30:31], v[30:31], v[34:35]")
    e("v_permlane32_swap_b32 v20, v22"); e("v_permlane32_swap_b32 v21, v23"); e("v_permlane32_swap_b32 v28, v30"); e("v_permlane32_swap_b32 v29, v31")
    e("v_pk_add_f32 v[20:21], v[20:21], v[22:23]"); e("v_pk_add_f32 v[28:29], v[28:29], v[30:31]")
    e("v_permlane16_swap_b32 v20, v21"); e("v_permlane16_swap_b32 v28, v29")
    e("v_add_f32 v20, v20, v21"); e("v_add_f32 v28, v28, v29")
    for sh in (4, 8):
        e(f"v_add_f32_dpp v20, v20, v20 row_ror:{sh} row_mask:0xf bank_mask:0xf"); e(f"v_add_f32_dpp v28, v28, v28 row_ror:{sh} row_mask:0xf bank_mask:0xf")
    e("v_cvt_pk_bf16_f32 v20, v28, v20"); e("v_and_b32 v21, s51, v20"); e("v_lshlrev_b32 v20, 16, v20")
    e("v_mul_f32 v22, s52, v21"); e("v_exp_f32 v22, v22"); e("v_add_f32 v22, 1.0, v22"); e("v_rcp_f32 v22, v22"); e("v_mul_f32 v21, v21, v22")
    e("v_cvt_pk_bf16_f32 v21, v21, v21"); e("v_and_b32 v21, s51, v21")
    e("v_mul_f32 v20, v20, v21"); e("v_cvt_pk_bf16_f32 v20, v20, v20"); e("v_and_b32 v20, s51, v20")
    e("v_add_f32 v20, v4, v20"); e("v_cvt_pk_bf16_f32 v20, v20, v20")
    e("s_mov_b32 exec_lo, 0x000f000f"); e("s_mov_b32 exec_hi, 0x000f000f")
    e("global_store_short v3, v20, s[24:25]")
    e("s_cmp_lg_u32 s2, 0"); e("s_cbranch_scc1 L_fin")
    e("s_mov_b64 exec, 1"); e(f"v_mov_b32 v21, {EPOCH}"); e("v_mov_b32 v22, s48")
    e("global_store_dword v21, v22, s[26:27]")
    e("L_fin:")
    stamp(13)
    dump()
    e("L_end:")
    e("s_endpgm")
    body = pad(L)
    out = HEADER + f"; @launch grid=(256,1,1) block=(576,1,1) lds={LDS_END}\n"
    out += '.amdgcn_target "amdgcn-amd-amdhsa--gfx950"\n.text\n' + f".globl {KN}\n.p2align 8\n.type {KN},@function\n"
    out += "\n".join(x if x.endswith(":") else "    " + x for x in body) + "\n"
    out += f""".section .rodata,"a"
.p2align 6
.amdhsa_kernel {KN}
  .amdhsa_next_free_vgpr 128
  .amdhsa_next_free_sgpr 96
  .amdhsa_accum_offset 128
  .amdhsa_group_segment_fixed_size 0
  .amdhsa_kernarg_size 88
  .amdhsa_user_sgpr_count 2
  .amdhsa_user_sgpr_kernarg_segment_ptr 1
  .amdhsa_system_sgpr_workgroup_id_x 1
  .amdhsa_float_denorm_mode_32 3
.end_amdhsa_kernel
"""
    return out
if __name__ == "__main__":
    open(sys.argv[1] if len(sys.argv) > 1 else f"cdna_kernels/{NAME}.s", "w").write(gen())
```

```python
import sys, struct
sys.path.insert(0, "gen")
from asmlib import pad
NAME = "recurrent_scan__sliding_block_cached__dense_activation_silu__decode"
KN = NAME + "_kernel"
def f2u(x): return struct.unpack("<I", struct.pack("<f", x))[0]
XN, ACT, QL, MX, PL, XR, S1T = 0, 1600, 3200, 3776, 3904, 4928, 9728
QZ = QL + 544
S4T = S1T + 41472
VL = S4T + 41472
LDS_END = VL + 65536
assert VL % 256 == 0 and LDS_END <= 163840
PITCH = 400
EPOCH, X1, OX, FX = 0, 4096, 593920, 888832
FXP = 16384 + 256
STAMP = 0x8000000
LOG2E = 1.4426950408889634
DPP = "row_mask:0xf bank_mask:0xf"
HEADER = open(f"cdna_kernels/{NAME}.s.ref").read().split("; Override launch")[0]
DOC = f"""; out = x + (attn(ln(x)) @ wo) * silu(silu(ln(x) @ w1) @ w2), one launch, one workgroup (9 waves) per CU.
;
;
"""

def gen(stamps=False, diag=None, diagwg=0xe0, spin=1 << 20, align=True):
    L = []; e = L.append
    def c(t): e("; " + t)
    nlab = [0]
    def lab(p):
        nlab[0] += 1; return f"L_{p}{nlab[0]}"
    def stamp(i):
        if stamps or (diag is not None and i in (0, diag)): e(f"s_memrealtime s[{64+2*i}:{65+2*i}]")
    def dump():
        if not stamps: return
        e("s_waitcnt lgkmcnt(0)")
        l = lab("dl")
        e(f"{l}:"); e("s_sleep 20"); e("s_memrealtime s[50:51]"); e("s_waitcnt lgkmcnt(0)"); e("s_sub_u32 s50, s50, s64"); e("s_cmp_lt_u32 s50, 1600"); e(f"s_cbranch_scc1 {l}")
        e("s_mov_b64 exec, -1")
        e("s_mul_i32 s50, s2, 9"); e("s_add_u32 s50, s50, s3"); e("s_lshl_b32 s50, s50, 6"); e(f"s_add_u32 s50, s50, {STAMP}")
        e("v_mov_b32 v9, s50"); e("s_min_u32 s94, s60, 1"); e("s_getreg_b32 s51, hwreg(HW_REG_XCC_ID, 0, 4)"); e("s_lshl4_add_u32 s94, s51, s94")
        e("s_getreg_b32 s51, hwreg(HW_REG_HW_ID)"); e("s_lshl_b32 s51, s51, 8"); e("s_or_b32 s94, s94, s51"); e("s_mov_b32 s92, s49")
        for i in range(16):
            e(f"v_mov_b32 v10, s{64+2*i}"); e(f"global_store_dword v9, v10, s[26:27] offset:{4*i}")
    def bar(t): e(f"s_barrier                                ; {t}")
    def mfma(d, a, b, first): e(f"v_mfma_f32_16x16x32_bf16 v[{d}:{d+3}], v[{a}:{a+3}], v[{b}:{b+3}], " + ("0" if first else f"v[{d}:{d+3}]"))
    def tags():
        c("s48 = this launch's tag, s44..s47 = its bytes")
        e("s_add_u32 s48, s48, 0x01010101")
        e("s_and_b32 s44, s48, 0xff"); e("s_bfe_u32 s45, s48, 0x80008"); e("s_bfe_u32 s46, s48, 0x80010"); e("s_lshr_b32 s47, s48, 24")
    def xcd_load():
        e("s_lshl_b32 s50, s4, 4"); e("s_load_dwordx4 s[60:63], s[30:31], s50")
    def xcd_flag():
        c("s60 = 0 iff all 16 workgroups of this group posted this XCD's id")
        e("s_mul_i32 s40, s40, 0x01010101"); e("s_mov_b32 s41, s40")
        e("s_xor_b64 s[60:61], s[60:61], s[40:41]"); e("s_xor_b64 s[62:63], s[62:63], s[40:41]")
        e("s_or_b64 s[60:61], s[60:61], s[62:63]"); e("s_or_b32 s60, s60, s61")
    def gstore(text):
        a, b = lab("near"), lab("sent")
        e(f"s_cbranch_scc0 {a}"); e(text + " sc1"); e(f"s_branch {b}"); e(f"{a}:"); e(text); e(f"{b}:")
    def publish(vSt, mask, group):
        e(f"s_mov_b32 exec_lo, {mask}"); e(f"s_mov_b32 exec_hi, {mask}")
        if group: e("s_cmp_lg_u32 s60, 0"); e("s_nop 4")
        else: e("s_nop 5")
        for r in range(4): e(f"v_bfi_b32 v{120+r}, v11, s{44+r}, v{120+r}")
        st = f"global_store_dwordx4 v{vSt}, v[120:123], s[26:27]"
        if group: gstore(st)
        else: e(st + " sc1")
        e("s_mov_b64 exec, -1")
    def tile_reads(tbase, p0, p1):
        for p in range(p0, p1): e(f"ds_read_b64_tr_b16 v[{80+2*p}:{81+2*p}], v6 offset:{tbase + p*4608}")
    def act_reads(abase, last):
        for s in range(4): e(f"ds_read_b128 v[{100+4*s}:{103+4*s}], v7 offset:{abase + 64*s}")
        if last: e(f"ds_read_b64 v[116:117], v7 offset:{abase + 256}")
    def stage1():
        tile_reads(S1T, 0, 9); act_reads(XN, True)
        for s in range(5):
            e(f"s_waitcnt lgkmcnt({4 - s})"); mfma(120, 80 + 4*s, 100 + 4*s, s == 0)
        publish(8, "0x000f000f", True)
    def untag(base, n, acc):
        for g in range(n):
            for r in range(4): e(f"v_xor_b32 v{base+4*g+r}, s{44+r}, v{base+4*g+r}")
        regs = list(range(base, base + 4*n))
        e(f"v_or3_b32 v{acc}, v{regs[0]}, v{regs[1]}, v{regs[2]}")
        regs = regs[3:]
        while len(regs) >= 2:
            e(f"v_or3_b32 v{acc}, v{acc}, v{regs[0]}, v{regs[1]}"); regs = regs[2:]
        if regs: e(f"v_or_b32 v{acc}, v{acc}, v{regs[0]}")
        e(f"v_and_b32 v{acc}, v11, v{acc}")
        e(f"v_cmp_ne_u32 vcc, 0, v{acc}")
    def poll_end(top, out):
        e(f"s_cbranch_vccz {out}")
        e("s_sub_u32 s49, s49, 1"); e(f"s_cbranch_scc0 {top}")
        e("s_mov_b32 s49, 0")
        e(f"{out}:")
    def rscat(bs):
        for b in bs: e(f"v_permlane32_swap_b32 v{b}, v{b+2}"); e(f"v_permlane32_swap_b32 v{b+1}, v{b+3}")
        for b in bs: e(f"v_pk_add_f32 v[{b}:{b+1}], v[{b}:{b+1}], v[{b+2}:{b+3}]")
        for b in bs: e(f"v_permlane16_swap_b32 v{b}, v{b+1}")
        for b in bs: e(f"v_add_f32 v{b}, v{b}, v{b+1}")
    def tile_addrs():
        c("v6 tile read address, v7 activation read address, v8 / v15 where stage 1 / stage 3 results go")
        e("v_mov_b32 v11, 0xff")
        e("v_mov_b32 v98, 0"); e("v_mov_b32 v99, 0"); e("v_mov_b32 v118, 0"); e("v_mov_b32 v119, 0")
        e(f"s_mov_b32 s49, {spin}")
        e("v_lshrrev_b32 v6, 2, v1"); e("v_mul_u32_u24 v6, 288, v6"); e("v_lshl_add_u32 v6, v12, 3, v6")
        e("s_lshl_b32 s50, s3, 5"); e("v_add_u32 v6, s50, v6")
        e(f"v_mul_u32_u24 v7, {PITCH}, v12"); e("v_lshl_add_u32 v7, v14, 4, v7")
        e("s_lshl_b32 s50, s6, 5"); e("s_add_u32 s50, s50, s7")
        e("s_mul_i32 s51, s50, 9216"); e("s_lshl_b32 s52, s3, 10"); e("s_add_u32 s51, s51, s52")
        e("s_lshl_b32 s52, s28, 8"); e("s_add_u32 s51, s51, s52"); e(f"s_add_u32 s51, s51, {X1}")
        e("v_lshlrev_b32 v8, 4, v14"); e("v_lshl_add_u32 v15, v12, 6, v8"); e("v_add_u32 v8, s51, v15")
        e("s_mul_i32 s51, s28, 9"); e("s_add_u32 s51, s51, s3"); e(f"s_mul_i32 s51, s51, {FXP}"); e("s_lshl_b32 s50, s50, 8")
        e("s_add_u32 s51, s51, s50"); e(f"s_add_u32 s51, s51, {FX}"); e("v_add_u32 v15, s51, v15")
    def h_addrs():
        c("type 0: v128 this wave's 16 columns of the hidden partials, v129 where their activations go in LDS")
        e("s_mul_i32 s50, s7, 9"); e("s_add_u32 s50, s50, s3"); e("s_lshl_b32 s50, s50, 10"); e(f"s_add_u32 s50, s50, {X1}")
        e("v_lshl_add_u32 v128, v1, 4, s50")
        e("s_lshr_b32 s50, s3, 1"); e("s_lshl_b32 s50, s50, 6"); e("s_and_b32 s54, s3, 1"); e("s_lshl3_add_u32 s50, s54, s50")
        e("v_bfe_u32 v129, v1, 2, 2"); e(f"v_mul_u32_u24 v129, {PITCH}, v129"); e("v_lshl_add_u32 v129, v12, 4, v129")
        e("v_lshl_add_u32 v129, v14, 1, v129"); e("v_add_u32 v129, s50, v129")
    def s4load(n):
        e("s_mov_b32 exec_hi, 0x003fffff")
        for t in range(n):
            e("buffer_load_dwordx4 v3, s[36:39], s58 offen nt lds")
            e("s_add_u32 m0, m0, 6912"); e("s_add_u32 s58, s58, 27648")
        e("s_mov_b32 exec_hi, -1")
    def kload(t):
        for r in range(4): e(f"global_load_dwordx4 v[{16+16*t+4*r}:{19+16*t+4*r}], v4, s[10:11] offset:{256*r} nt")
    def vload():
        for r in range(4): e(f"global_load_lds_dwordx4 v{4 if r & 1 else 5}, s[12:13] offset:{1024*r} nt")
    def oproc():
        e("v_pk_mul_f32 v[20:21], v[20:21], v[28:29]"); e("v_pk_mul_f32 v[22:23], v[22:23], v[28:29]")
        for sh in (8, 4):
            for r in range(4): e(f"v_add_f32_dpp v{20+r}, v{20+r}, v{20+r} row_ror:{sh} {DPP}")
        e("v_cvt_pk_bf16_f32 v20, v20, v21"); e("v_cvt_pk_bf16_f32 v21, v22, v23")
        e(f"ds_write_b64 v129, v[20:21] offset:{ACT}")
        e("s_waitcnt lgkmcnt(0)")

    e(f"{KN}:")
    stamp(0)
    e("s_load_dwordx16 s[8:23], s[0:1], 0")
    e("s_load_dwordx2 s[24:25], s[0:1], 64     ; out")
    e("s_load_dwordx2 s[26:27], s[0:1], 80     ; ws")
    e("s_load_dwordx2 s[30:31], s[0:1], 72     ; debug")
    e("s_cmp_ge_u32 s2, 256"); e("s_cbranch_scc1 L_end")
    e("v_lshrrev_b32 v2, 6, v0"); e("v_and_b32 v1, 63, v0")
    e("v_readfirstlane_b32 s3, v2")
    e("s_and_b32 s4, s2, 15                    ; hkv")
    e("s_lshr_b32 s5, s2, 4                    ; j")
    e("s_lshr_b32 s6, s2, 7                    ; type")
    e("s_bfe_u32 s29, s2, 0x10006")
    e("s_lshl1_add_u32 s7, s4, s29")
    e("s_and_b32 s28, s5, 3")
    e("s_getreg_b32 s40, hwreg(HW_REG_XCC_ID, 0, 4)"); e("s_bitset1_b32 s40, 7")
    e("v_lshlrev_b32 v13, 4, v1")
    e("s_sub_u32 s3, s3, 1"); e("s_cbranch_scc0 L_stream")
    c("---- service wave, head: pull the code into L2, post the XCD id, fetch x into LDS ----")
    e("s_mov_b32 s3, 8")
    e("s_getpc_b64 s[52:53]"); e("L_pc:")
    e("v_lshlrev_b32 v4, 7, v1"); e("v_min_u32 v4, L_end-L_pc, v4")
    e("global_load_dword v5, v4, s[52:53]")
    e(f"s_mov_b32 m0, {XR}"); e("v_add_u32 v4, 4096, v13")
    e("s_lshl4_add_u32 s53, s4, s5"); e("v_mov_b32 v7, s53"); e("v_mov_b32 v6, s40")
    e("s_and_b32 s53, s53, 0xc0"); e("s_xor_b32 s53, s53, 64"); e("s_mov_b64 exec, 1")
    e("s_waitcnt lgkmcnt(0)")
    e(f"s_load_dword s48, s[26:27], {EPOCH}")
    e("s_load_dword s42, s[30:31], s53")
    e("global_store_byte v7, v6, s[30:31]"); e("s_mov_b64 exec, -1")
    for i in range(4): e(f"global_load_lds_dwordx4 v13, s[8:9] offset:{1024*i}")
    e(f"s_mov_b32 m0, {XR + 4096}"); e("s_mov_b32 exec_hi, 0")
    e("global_load_lds_dwordx4 v4, s[8:9]")
    e("s_mov_b32 exec_hi, -1")
    e("s_branch L_service")

    e("L_stream:")
    c("---- stream waves: first tile -> LDS, 3 rows of 288 bytes pitch per load ----")
    e("s_and_b32 s50, s2, 7"); e("s_lshr_b32 s51, s4, 3"); e("s_lshl1_add_u32 s50, s50, s51"); e("s_lshl1_add_u32 s50, s50, s29")
    e("s_cmp_lg_u32 s6, 0"); e("s_cselect_b32 s43, s7, s50")
    e("s_sub_u32 s51, 9, s6")
    e("s_mul_i32 s59, s51, 18432")
    e("s_lshl_b32 s50, s51, 10")
    e("s_mul_i32 s34, s51, 589824")
    e("s_lshl_b32 s51, s51, 5")
    e("s_mov_b32 s35, 0x20000")
    e("s_mul_i32 s51, s51, s43")
    e("s_mul_i32 s52, s28, 48"); e("s_add_u32 s52, s52, s3"); e("s_mul_i32 s52, s52, s50"); e("s_mul_i32 s52, s52, 3"); e("s_add_u32 s42, s51, s52")
    e("v_mul_u32_u24 v9, 57, v1"); e("v_lshrrev_b32 v9, 10, v9                ; lane / 18")
    e("v_mul_u32_u24 v10, 288, v9"); e("v_sub_u32 v10, v13, v10                 ; (lane % 18) * 16")
    e("v_mad_u32_u24 v2, v9, s50, v10")
    e("s_mul_i32 s56, s50, 24")
    e("s_mul_i32 s57, s3, 864")
    e(f"s_add_u32 m0, s57, {S1T}")
    e("s_cmp_lg_u32 s6, 0")
    e("s_cselect_b32 s55, 0, 0x0030000c"); e("s_or_b32 exec_hi, s55, 0x000ffff3")
    e("s_cmp_lg_u32 s6, 0")
    e("s_cselect_b32 exec_lo, 0xfffcffff, -1")
    e("s_waitcnt lgkmcnt(0)")
    e("s_cselect_b64 s[32:33], s[14:15], s[20:21]")
    e("s_cselect_b64 s[36:37], s[16:17], s[22:23]")
    stamp(1)
    for t in range(6):
        e("buffer_load_dwordx4 v2, s[32:35], s42 offen nt lds")
        if t < 5: e("s_add_u32 m0, m0, 6912"); e("s_add_u32 s42, s42, s56")
    e("s_mov_b64 exec, -1")
    e(f"s_load_dword s48, s[26:27], {EPOCH}")
    c("K / V: two 16-key blocks per wave; the block order is rotated per workgroup to spread the HBM stacks")
    e("s_lshr_b32 s50, s5, 2"); e("s_lshl_b32 s50, s50, 24"); e("s_lshl_b32 s51, s4, 20"); e("s_add_u32 s50, s50, s51")
    e("s_lshl_b32 s51, s28, 16"); e("s_add_u32 s50, s50, s51")
    e("s_xor_b32 s51, s5, s4"); e("s_xor_b32 s51, s51, s3"); e("s_lshl_b32 s51, s51, 12"); e("s_add_u32 s50, s50, s51")
    e("s_add_u32 s50, s50, 786432")
    e("v_and_b32 v12, 3, v1"); e("v_lshrrev_b32 v14, 4, v1")
    e("v_lshlrev_b32 v5, 5, v14"); e("v_xor_b32 v5, v5, v13"); e("v_add_u32 v5, s50, v5")
    e("v_bfe_u32 v13, v1, 2, 2")
    e("v_lshl_add_u32 v4, v13, 10, s50"); e("v_lshl_add_u32 v4, v14, 6, v4"); e("v_lshl_add_u32 v4, v12, 4, v4           ; K source")
    e("s_mul_i32 s51, s59, s43"); e("s_add_u32 s38, s51, s59"); e("s_mov_b32 s39, 0x20000")
    e("s_mul_i32 s52, s28, 288"); e("s_add_u32 s51, s51, s52"); e("s_mul_i32 s52, s3, 3456"); e("s_add_u32 s58, s51, s52")
    e("v_mul_u32_u24 v3, 1152, v9"); e("v_add_u32 v3, v3, v10")
    tile_addrs()
    e("s_waitcnt vmcnt(2)")
    kload(0)
    xcd_load()
    e("v_xor_b32 v4, 0x8000, v4")
    e("s_waitcnt lgkmcnt(0)")
    tags(); xcd_flag()
    e("s_waitcnt vmcnt(4)")
    stamp(2)
    bar("B1: xn and the first tile are in LDS")
    stamp(3)
    stage1()
    e(f"v_add_u32 v6, {S4T}, v6")
    bar("B1b: stage 1 stores are issued")
    stamp(4)
    e("s_waitcnt vmcnt(3)")
    kload(1)
    c("v8 / v9 q fragments for block 0 / 1 (zeros in the other block's columns), v2 P slot, v10 max slot")
    e("v_bfe_u32 v10, v1, 2, 1")
    e("v_mul_u32_u24 v9, 272, v10"); e("v_lshl_add_u32 v9, v14, 6, v9"); e("v_lshl_add_u32 v9, v12, 4, v9")
    e("v_and_b32 v2, 8, v1"); e("v_cmp_eq_u32 vcc, 0, v2"); e(f"v_mov_b32 v4, {QZ - QL}")
    e("v_cndmask_b32 v8, v4, v9, vcc"); e("v_cndmask_b32 v9, v9, v4, vcc")
    e("s_lshr_b32 s50, s3, 1"); e("s_lshl_b32 s50, s50, 7"); e("s_and_b32 s51, s3, 1"); e("s_lshl3_add_u32 s50, s51, s50")
    e("v_lshl_add_u32 v2, v2, 6, s50"); e("v_lshl_add_u32 v2, v14, 5, v2"); e("v_lshl_add_u32 v2, v10, 4, v2")
    e("v_lshlrev_b32 v10, 2, v10")
    c("v124 V read address, v125 P read address, v126 where this wave's 16 columns of O go")
    e("v_lshrrev_b32 v124, 2, v1"); e("v_and_b32 v125, 7, v124"); e("v_xor_b32 v125, s3, v125")
    e("v_lshlrev_b32 v124, 8, v124"); e("v_lshl_add_u32 v124, v125, 5, v124"); e("v_lshl_add_u32 v124, v12, 3, v124"); e(f"v_add_u32 v124, {VL}, v124")
    e("v_and_b32 v126, 1, v1"); e("v_lshlrev_b32 v125, 5, v14"); e("v_lshl_add_u32 v125, v126, 4, v125")
    e("s_lshl4_add_u32 s50, s4, s5"); e("s_mul_i32 s50, s50, 1152"); e("s_lshl_b32 s51, s3, 7"); e("s_add_u32 s50, s50, s51"); e(f"s_add_u32 s50, s50, {OX}")
    e("v_lshl_add_u32 v126, v126, 6, s50"); e("v_lshl_add_u32 v126, v14, 4, v126")
    e("s_lshl_b32 s53, s3, 12"); e(f"s_add_u32 m0, s53, {VL}")
    e("v_xor_b32 v4, 0x80, v5")
    e("s_waitcnt vmcnt(2)")
    vload()
    e("s_add_u32 m0, m0, 32768")
    e("v_xor_b32 v5, 0x8000, v5"); e("v_xor_b32 v4, 0x8000, v4")
    c("type 1: wave = (batch, half of d), lane = (16 columns, chunk, 4 columns): v128 O, v127 (max, sum), v129 LDS slot")
    e("s_lshr_b32 s50, s3, 1"); e("s_and_b32 s51, s3, 1")
    e("s_lshl2_add_u32 s53, s4, s50"); e("s_mul_i32 s53, s53, 4608"); e("s_lshl_b32 s54, s29, 6"); e("s_add_u32 s53, s53, s54"); e(f"s_add_u32 s53, s53, {OX}")
    e("v_mul_u32_u24 v127, 1152, v13"); e("v_lshl_add_u32 v127, v12, 4, v127"); e("v_add_u32 v127, s53, v127")
    e("s_cmp_eq_u32 s6, 0"); e("s_cbranch_scc1 L_addrA")
    e("s_lshl_b32 s55, s51, 9")
    e("v_lshl_add_u32 v128, v14, 7, v127"); e("v_add_u32 v128, s55, v128")
    e(f"s_mul_i32 s50, s50, {PITCH}"); e("s_lshl_b32 s51, s51, 7"); e("s_add_u32 s50, s50, s51")
    e("v_lshrrev_b32 v13, 5, v1"); e("v_lshl_add_u32 v129, v13, 6, s50"); e("v_lshl_add_u32 v129, v12, 4, v129")
    e("v_and_b32 v13, 1, v14"); e("v_lshl_add_u32 v129, v13, 3, v129")
    e("s_waitcnt vmcnt(2)")
    e("s_branch L_v1")
    e("L_addrA:")
    h_addrs()
    e("s_waitcnt vmcnt(2)")
    e("global_load_dwordx4 v[100:103], v128, s[26:27] sc1")
    e("L_v1:")
    vload()
    e(f"s_add_u32 m0, s57, {S4T}")
    e(f"s_mov_b32 s54, {hex(f2u(128 ** -0.5))}"); e("s_mov_b32 s51, 0xffff0000"); e(f"s_mov_b32 s52, {hex(f2u(LOG2E))}")
    stamp(5)
    bar("B2: q is in LDS")
    stamp(6)
    c("scores: rows (key, quarter of d) x columns (block, head, quarter of d); the diagonal quarters are summed")
    e(f"ds_read_b128 v[48:51], v8 offset:{QL}"); e(f"ds_read_b128 v[52:55], v9 offset:{QL}")
    e("s_waitcnt lgkmcnt(1)")
    for r in range(4): mfma(56 + 4*r, 16 + 4*r, 48, True)
    e("s_waitcnt lgkmcnt(0)")
    for r in range(4): mfma(56 + 4*r, 32 + 4*r, 52, False)
    for q in (1, 2, 3):
        for r in range(4):
            e(f"v_add_f32_dpp v{72+r}, v{56+4*r+q}, v{56+4*r if q == 1 else 72+r} quad_perm:[{q},{q},{q},{q}] {DPP}")
    def rnd():
        for p in range(2): e(f"v_cvt_pk_bf16_f32 v{76+p}, v{72+2*p}, v{73+2*p}")
        for p in range(2):
            e(f"v_lshlrev_b32 v{72+2*p}, 16, v{76+p}"); e(f"v_and_b32 v{73+2*p}, s51, v{76+p}")
    c("bf16(bf16(q.k) * 128^-0.5), as the reference rounds them")
    rnd()
    for p in range(2): e(f"v_pk_mul_f32 v[{72+2*p}:{73+2*p}], v[{72+2*p}:{73+2*p}], s[54:55] op_sel_hi:[1,0]")
    rnd()
    e("v_max3_f32 v76, v72, v73, v74"); e("v_max_f32 v76, v76, v75")
    e("s_mov_b32 exec_lo, 0x11111111"); e("s_mov_b32 exec_hi, 0x11111111")
    e(f"ds_max_f32 v10, v76 offset:{MX}")
    e("s_waitcnt lgkmcnt(0)")
    bar("B2b: the chunk's maxima are in LDS")
    e(f"ds_read_b32 v56, v10 offset:{MX}")
    e("s_waitcnt lgkmcnt(0)")
    for p in range(2): e(f"v_pk_add_f32 v[{72+2*p}:{73+2*p}], v[{72+2*p}:{73+2*p}], v[56:57] op_sel_hi:[1,0] neg_lo:[0,1] neg_hi:[0,1]")
    for p in range(2): e(f"v_pk_mul_f32 v[{72+2*p}:{73+2*p}], v[{72+2*p}:{73+2*p}], s[52:53] op_sel_hi:[1,0]")
    for i in range(4): e(f"v_exp_f32 v{72+i}, v{72+i}")
    e("v_cvt_pk_bf16_f32 v76, v72, v73"); e("v_cvt_pk_bf16_f32 v77, v74, v75")
    e(f"ds_write_b64 v2, v[76:77] offset:{PL}")
    e("s_mov_b64 exec, -1")
    e("s_cmp_eq_u32 s6, 0")
    e("s_waitcnt vmcnt(5) lgkmcnt(0)")
    e("s_cbranch_scc1 L_b2c"); e("s_waitcnt vmcnt(4)"); e("L_b2c:")
    bar("B2c: P and the first half of V are in LDS")
    stamp(7)
    c("O[16 columns of this wave] over all 256 keys of the chunk")
    for a in range(4):
        e(f"ds_read_b128 v[{16+4*a}:{19+4*a}], v125 offset:{PL + 128*a}")
        for x in range(2): e(f"ds_read_b64_tr_b16 v[{48+4*a+2*x}:{49+4*a+2*x}], v124 offset:{(2*a+x)*4096}")
    for a in range(4):
        e(f"s_waitcnt lgkmcnt({9-3*a})"); mfma(120, 48 + 4*a, 16 + 4*a, a == 0)
    for a in range(4): e(f"ds_read_b128 v[{32+4*a}:{35+4*a}], v125 offset:{PL + 512 + 128*a}")
    s4load(3)
    e("s_waitcnt vmcnt(3) lgkmcnt(0)")
    stamp(8)
    bar("B3: the second half of V is in LDS")
    for a in range(4):
        for x in range(2): e(f"ds_read_b64_tr_b16 v[{64+4*a+2*x}:{65+4*a+2*x}], v124 offset:{32768 + (2*a+x)*4096}")
    for a in range(4):
        e(f"s_waitcnt lgkmcnt({6-2*a})"); mfma(120, 64 + 4*a, 32 + 4*a, False)
    publish(126, "0x00030003", True)
    stamp(9)
    bar("B3b: every O store is ahead of the remaining tile loads")
    s4load(3)
    e("s_cmp_eq_u32 s6, 0"); e("s_cbranch_scc1 L_hchk")
    c("---- type 1: merge the four chunks of every batch, then wo ----")
    if stamps: e("s_waitcnt vmcnt(3)"); stamp(1)
    e("s_waitcnt vmcnt(0)")
    e("global_load_dwordx4 v[24:27], v127, s[26:27] offset:1024 sc1")
    e("global_load_dwordx4 v[20:23], v128, s[26:27] sc1")
    stamp(10)
    e("s_waitcnt vmcnt(1)")
    e("s_branch L_mchk")
    e("L_mpoll:")
    e("global_load_dwordx4 v[24:27], v127, s[26:27] offset:1024 sc1")
    e("s_waitcnt vmcnt(0)")
    e("L_mchk:")
    untag(24, 1, 28)
    poll_end("L_mpoll", "L_mgot")
    c("v28 = v29 = exp(m_c - M) / sum_c exp(m_c - M) l_c")
    e(f"v_max_f32_dpp v28, v24, v24 row_ror:4 {DPP}"); e(f"v_max_f32_dpp v28, v28, v28 row_ror:8 {DPP}")
    e("v_sub_f32 v28, v24, v28"); e("v_mul_f32 v28, s52, v28"); e("v_exp_f32 v28, v28")
    e("v_mul_f32 v25, v25, v28")
    e(f"v_add_f32_dpp v25, v25, v25 row_ror:8 {DPP}"); e(f"v_add_f32_dpp v25, v25, v25 row_ror:4 {DPP}")
    e("v_rcp_f32 v25, v25")
    e("v_mul_f32 v28, v28, v25"); e("v_mov_b32 v29, v28")
    e("s_waitcnt vmcnt(0)")
    untag(20, 1, 30)
    e("s_cbranch_vccnz L_oslow")
    oproc()
    stamp(11)
    e("L_b4a:")
    bar("B4a: the second tile is in LDS")
    tile_reads(0, 0, 8)
    e("L_b4b:")
    bar("B4b: o is in LDS")
    stamp(12)
    act_reads(ACT, False)
    for s in range(4):
        e(f"s_waitcnt lgkmcnt({3 - s})"); mfma(120, 80 + 4*s, 100 + 4*s, s == 0)
    e("L_pub:")
    publish(15, "0x000f000f", False)
    e("s_cmp_eq_u32 s3, 8"); e("s_cbranch_scc1 L_final")
    stamp(13)
    dump()
    e("s_endpgm")
    c("---- type 0: silu of the summed hidden partials, then w2 ----")
    e("L_hpoll:")
    e("global_load_dwordx4 v[100:103], v128, s[26:27] sc1")
    e("s_waitcnt vmcnt(0)")
    e("L_hchk:")
    untag(100, 1, 104)
    poll_end("L_hpoll", "L_hgot")
    rscat([100])
    e("v_cvt_pk_bf16_f32 v100, v100, v100"); e("v_and_b32 v100, 0xffff0000, v100")
    e(f"v_mul_f32 v101, {hex(f2u(-LOG2E))}, v100"); e("v_exp_f32 v101, v101"); e("v_add_f32 v101, 1.0, v101"); e("v_rcp_f32 v101, v101")
    e("v_mul_f32 v100, v100, v101"); e("v_cvt_pk_bf16_f32 v100, v100, v100")
    e(f"ds_write_b16 v129, v100 offset:{ACT}")
    e("s_waitcnt vmcnt(3) lgkmcnt(0)")
    stamp(1)
    bar("B3c: the activations and tile rows 0..71 are in LDS")
    act_reads(ACT, True)
    tile_reads(0, 0, 4)
    e("s_waitcnt lgkmcnt(0)")
    for s in range(2): mfma(120, 80 + 4*s, 100 + 4*s, s == 0)
    e("s_waitcnt vmcnt(0)")
    stamp(10)
    bar("B4a: the second tile is in LDS")
    stamp(12)
    tile_reads(0, 4, 9)
    for s in range(2, 5):
        e(f"s_waitcnt lgkmcnt({max(7 - 2*s, 0)})"); mfma(120, 80 + 4*s, 100 + 4*s, False)
    e("s_branch L_pub")
    c("---- type 1, some chunk's O is still on its way ----")
    e("L_oslow:")
    e("global_load_dwordx4 v[20:23], v128, s[26:27] sc1")
    bar("B4a")
    tile_reads(0, 0, 8)
    e("s_branch L_ochk")
    e("L_opoll:")
    e("global_load_dwordx4 v[20:23], v128, s[26:27] sc1")
    e("L_ochk:")
    e("s_waitcnt vmcnt(0)")
    untag(20, 1, 30)
    poll_end("L_opoll", "L_ogot")
    oproc()
    stamp(11)
    e("s_branch L_b4b")

    c("---- service wave ----")
    e("L_service:")
    e("v_lshrrev_b32 v14, 4, v1"); e("v_and_b32 v12, 3, v1"); e("v_and_b32 v13, 15, v1")
    e("v_mul_u32_u24 v2, 1152, v14"); e("v_lshl_add_u32 v2, v13, 3, v2")
    e("s_mul_i32 s50, s28, 288"); e("v_add_u32 v16, s50, v2")
    c("stage 4 role: s56 tile of 16 output columns (< 36), s57 batch; v3 byte offset of this lane's output")
    e("s_xor_b32 s50, s2, 0xe0")
    e("s_and_b32 s56, s50, 7"); e("s_lshr_b32 s51, s50, 5"); e("s_lshl3_add_u32 s56, s51, s56"); e("s_bfe_u32 s57, s50, 0x20003")
    e("s_mul_i32 s51, s57, 1152"); e("s_lshl_b32 s52, s56, 5"); e("s_add_u32 s51, s51, s52")
    e("v_lshl_add_u32 v3, v12, 3, s51"); e("v_lshl_add_u32 v3, v14, 1, v3")
    tile_addrs()
    e(f"ds_write_b64 v98, v[98:99] offset:{QZ}"); e(f"ds_write_b64 v98, v[98:99] offset:{QZ+8}")
    e("v_mov_b32 v20, 0xff800000"); e("v_mov_b32 v21, v20"); e(f"ds_write_b64 v98, v[20:21] offset:{MX}")
    e("s_mov_b32 s51, 0xffff0000")
    e(f"v_mul_u32_u24 v9, {PITCH}, v14"); e("v_bfe_u32 v10, v1, 3, 1"); e("v_lshl_add_u32 v9, v10, 6, v9"); e("v_lshl_add_u32 v9, v12, 4, v9")
    e("v_bfe_u32 v10, v1, 2, 1"); e("v_lshl_add_u32 v9, v10, 3, v9")
    stamp(1)
    e("s_waitcnt vmcnt(0)")
    stamp(2)
    c("layernorm: 16 lanes per batch row, two passes, rounded to bf16 where the reference rounds")
    for i in range(3): e(f"ds_read_b64 v[{34+2*i}:{35+2*i}], v16 offset:{XR + 128*i}")
    for i in range(9): e(f"ds_read_b64 v[{16+2*i}:{17+2*i}], v2 offset:{XR + 128*i}")
    e(f"ds_read_u16 v4, v3 offset:{XR}")
    e("s_waitcnt lgkmcnt(0)")
    for k in range(18):
        e(f"v_lshlrev_b32 v{40+2*k}, 16, v{16+k}"); e(f"v_and_b32 v{41+2*k}, s51, v{16+k}")
    e("v_pk_add_f32 v[76:77], v[40:41], v[42:43]"); e("v_pk_add_f32 v[78:79], v[44:45], v[46:47]")
    for k in range(4, 18): e(f"v_pk_add_f32 v[{76+2*(k&1)}:{77+2*(k&1)}], v[{76+2*(k&1)}:{77+2*(k&1)}], v[{40+2*k}:{41+2*k}]")
    def rowsum():
        e("v_pk_add_f32 v[76:77], v[76:77], v[78:79]"); e("v_add_f32 v76, v76, v77")
        for sh in (8, 4, 2, 1): e(f"v_add_f32_dpp v76, v76, v76 row_ror:{sh} {DPP}")
    rowsum()
    e(f"v_mul_f32 v16, {hex(f2u(-1.0/576))}, v76"); e("v_mov_b32 v17, v16")
    for k in range(18): e(f"v_pk_add_f32 v[{40+2*k}:{41+2*k}], v[{40+2*k}:{41+2*k}], v[16:17]")
    e("v_pk_mul_f32 v[76:77], v[40:41], v[40:41]"); e("v_pk_mul_f32 v[78:79], v[42:43], v[42:43]")
    for k in range(2, 18): e(f"v_pk_fma_f32 v[{76+2*(k&1)}:{77+2*(k&1)}], v[{40+2*k}:{41+2*k}], v[{40+2*k}:{41+2*k}], v[{76+2*(k&1)}:{77+2*(k&1)}]")
    rowsum()
    e(f"v_mul_f32 v18, {hex(f2u(1.0/576))}, v76")
    e("v_cvt_pk_bf16_f32 v18, v16, v18"); e("v_lshlrev_b32 v16, 16, v18"); e("v_and_b32 v18, s51, v18")
    e(f"v_add_f32 v18, {hex(f2u(1e-5))}, v18"); e("v_cvt_pk_bf16_f32 v18, v18, v18"); e("v_and_b32 v18, s51, v18")
    e("v_sqrt_f32 v18, v18"); e("v_mov_b32 v17, v16"); e("v_cvt_pk_bf16_f32 v18, v18, v18"); e("v_and_b32 v18, s51, v18")
    e("v_rcp_f32 v18, v18")
    e("v_mov_b32 v19, v18")
    for k in range(6):
        e(f"v_lshlrev_b32 v{40+2*k}, 16, v{34+k}"); e(f"v_and_b32 v{41+2*k}, s51, v{34+k}")
    for k in range(6): e(f"v_pk_add_f32 v[{40+2*k}:{41+2*k}], v[{40+2*k}:{41+2*k}], v[16:17]")
    for k in range(6): e(f"v_cvt_pk_bf16_f32 v{34+k}, v{40+2*k}, v{41+2*k}")
    for k in range(6):
        e(f"v_lshlrev_b32 v{40+2*k}, 16, v{34+k}"); e(f"v_and_b32 v{41+2*k}, s51, v{34+k}")
    for k in range(6): e(f"v_pk_mul_f32 v[{40+2*k}:{41+2*k}], v[{40+2*k}:{41+2*k}], v[18:19]")
    for k in range(6): e(f"v_cvt_pk_bf16_f32 v{34+k}, v{40+2*k}, v{41+2*k}")
    for i in range(3): e(f"ds_write_b64 v9, v[{34+2*i}:{35+2*i}] offset:{XN + 128*i}")
    c("v16..v19 the q partials of this batch, v9 where q goes in LDS")
    e("s_mul_i32 s50, s4, 18432"); e("s_lshr_b32 s52, s5, 2"); e("s_lshl_b32 s52, s52, 6"); e("s_add_u32 s50, s50, s52"); e(f"s_add_u32 s50, s50, {X1 + 32*9216}")
    e("v_bfe_u32 v10, v1, 2, 2")
    e("v_lshl_add_u32 v16, v10, 10, s50"); e("v_lshl_add_u32 v16, v14, 8, v16"); e("v_lshl_add_u32 v16, v12, 4, v16")
    e("v_add_u32 v17, 4096, v16"); e("v_add_u32 v18, 9216, v16"); e("v_add_u32 v19, 13312, v16")
    e("v_lshlrev_b32 v9, 3, v13"); e("v_lshl_add_u32 v9, v14, 1, v9")
    c("v5: lines that later hand-offs write (own and type 0 partner's O record, the partner's hidden partials); type 1")
    c("loads them once so that the later stores and gathers find them in L2")
    e("s_lshl4_add_u32 s50, s4, s5"); e("s_mul_i32 s53, s50, 1152"); e(f"s_add_u32 s53, s53, {OX}")
    e(f"s_sub_u32 s50, s53, {8*1152 + 9*128}"); e("v_mov_b32 v20, s50"); e("v_mov_b32 v21, s53")
    e("v_cmp_gt_u32 vcc, 9, v1"); e("v_cndmask_b32 v5, v20, v21, vcc"); e("v_lshl_add_u32 v5, v1, 7, v5")
    e("s_mul_i32 s50, s7, 9216"); e("s_lshl_b32 s52, s28, 8"); e("s_add_u32 s50, s50, s52"); e(f"s_add_u32 s50, s50, {X1 - 9*1024}")
    e("v_min_u32 v20, 35, v1"); e("v_lshrrev_b32 v21, 1, v20"); e("v_lshl_add_u32 v21, v21, 10, s50"); e("v_and_b32 v20, 1, v20"); e("v_lshl_add_u32 v21, v20, 7, v21")
    e("v_cmp_gt_u32 vcc, 18, v1"); e("v_cndmask_b32 v5, v21, v5, vcc")
    e("v_mul_lo_u32 v5, v5, s6")
    e("s_waitcnt lgkmcnt(0)")
    xcd_load()
    tags()
    e("s_waitcnt lgkmcnt(0)")
    xcd_flag()
    stamp(3)
    bar("B1")
    e("s_cmp_lg_u32 s6, 0"); e("s_cbranch_scc1 L_nos1")
    stage1()
    e("L_nos1:")
    bar("B1b")
    c("returns after this CU's stage 1 stores went out, so the q gather does not run into them")
    e("global_load_dword v5, v5, s[26:27] sc1")
    e("s_waitcnt vmcnt(0)")
    stamp(4)
    e("L_qpoll:")
    for i in range(4): e(f"global_load_dwordx4 v[{60+4*i}:{63+4*i}], v{16+i}, s[26:27] sc1")
    e("s_waitcnt vmcnt(0)")
    untag(60, 4, 76)
    poll_end("L_qpoll", "L_qgot")
    stamp(5)
    rscat([60, 64, 68, 72])
    for i in range(4): e(f"v_cvt_pk_bf16_f32 v{60+4*i}, v{60+4*i}, v{60+4*i}")
    for i in range(4): e(f"ds_write_b16 v9, v{60+4*i} offset:{QL + (i>>1)*272 + (i&1)*128}")
    h_addrs()
    e("s_cmp_lg_u32 s6, 0"); e("s_cbranch_scc1 L_noh")
    e("global_load_dwordx4 v[100:103], v128, s[26:27] sc1")
    e("L_noh:")
    e("s_waitcnt lgkmcnt(0)")
    stamp(6)
    bar("B2")
    e(f"s_mov_b32 s52, {hex(f2u(-LOG2E))}")
    e("v_and_b32 v17, 1, v1")
    e("v_lshl_add_u32 v19, v17, 6, s53"); e("v_and_b32 v16, 6, v1"); e("v_lshl_add_u32 v19, v16, 3, v19")
    e("v_lshlrev_b32 v16, 5, v14"); e("v_lshl_add_u32 v16, v17, 4, v16")
    e("v_lshlrev_b32 v17, 2, v17")
    for r in range(4): e(f"v_mov_b32 v{56+r}, 0x3f803f80")
    e(f"v_add_u32 v6, {S4T}, v6")
    c("v124..v127 the 64 partials of this workgroup's outputs; v8 / v9 its byte and its group's bytes in d_debug")
    e("s_lshl4_add_u32 s50, s4, s5"); e("v_mov_b32 v8, s50"); e("s_andn2_b32 s50, s50, 15"); e("v_or_b32 v9, s50, v13"); e("v_mov_b32 v10, 0x40")
    e(f"s_mul_i32 s50, s56, {FXP}"); e("s_lshl_b32 s53, s57, 6"); e("s_add_u32 s50, s50, s53"); e(f"s_add_u32 s50, s50, {FX}")
    e("v_lshrrev_b32 v124, 2, v1"); e("v_lshl_add_u32 v124, v124, 8, s50"); e("v_lshl_add_u32 v124, v12, 4, v124")
    e("v_add_u32 v125, 4096, v124"); e("v_add_u32 v126, 8192, v124"); e("v_add_u32 v127, 12288, v124")
    e("v_lshlrev_b32 v4, 16, v4")
    e("s_and_b32 s40, s40, 0xff"); e("s_movk_i32 s41, 4096")
    bar("B2b")
    bar("B2c")
    c("row sums of P (ones @ P) and the maxima -> the (max, sum) line of the O record")
    e(f"ds_read_b32 v60, v17 offset:{MX}")
    for k in range(8): e(f"ds_read_b128 v[{64+4*k}:{67+4*k}], v16 offset:{PL + 128*k}")
    for k in range(8):
        e(f"s_waitcnt lgkmcnt({7-k})"); mfma(120, 56, 64 + 4*k, k == 0)
    e("v_bfi_b32 v62, v11, s46, v60"); e("v_bfi_b32 v60, v11, s44, v60")
    e("v_bfi_b32 v61, v11, s45, v120"); e("v_bfi_b32 v63, v11, s47, v120")
    e("s_mov_b64 exec, 0xff")
    e("s_cmp_lg_u32 s60, 0")
    gstore("global_store_dwordx4 v19, v[60:63], s[26:27] offset:1024")
    e("s_mov_b64 exec, -1")
    stamp(7)
    bar("B3")
    bar("B3b")
    stamp(8)
    e("s_waitcnt vmcnt(1)")
    e("s_cmp_eq_u32 s6, 0"); e("s_cbranch_scc1 L_hchk")
    e("s_branch L_b4a")
    c("---- stage 4 ----")
    e("L_final:")
    stamp(11)
    e("s_mov_b64 exec, 1"); e("global_store_byte v8, v10, s[30:31]"); e("s_mov_b64 exec, -1")
    e("s_cmp_ge_u32 s56, 36"); e("s_cbranch_scc1 L_fin")
    c("reading a line before it is written slows its writer down: hold off while neighbours on this XCD are still busy")
    e("L_gp:")
    e("global_load_ubyte v20, v9, s[30:31] sc1"); e("s_waitcnt vmcnt(0)")
    e("v_cmp_eq_u32 vcc, s40, v20")
    e("s_cbranch_vccz L_fpoll"); e("s_sub_u32 s41, s41, 1"); e("s_cbranch_scc0 L_gp")
    def ld(i): e(f"global_load_dwordx4 v[{32+4*i}:{35+4*i}], v{124+i}, s[26:27] sc1")
    def red(b, src):
        e(f"v_pk_add_f32 v[{b}:{b+1}], v[{src}:{src+1}], v[{src+4}:{src+5}]"); e(f"v_pk_add_f32 v[{b+2}:{b+3}], v[{src+2}:{src+3}], v[{src+6}:{src+7}]")
    def red2(bs):
        rscat(bs)
        for sh in (4, 8):
            for b in bs: e(f"v_add_f32_dpp v{b}, v{b}, v{b} row_ror:{sh} {DPP}")
    e("L_fpoll:")
    for i in (2, 3, 0, 1): ld(i)
    e("s_waitcnt vmcnt(2)")
    untag(40, 2, 19); red(28, 40)
    poll_end("L_fpoll", "L_sgot")
    e("s_waitcnt vmcnt(0)")
    untag(32, 2, 19); red(20, 32)
    e("s_cbranch_vccz L_fgot")
    ld(0); ld(1)
    red2([28])
    e("s_branch L_fchk")
    e("L_fp2:")
    ld(0); ld(1)
    e("L_fchk:")
    e("s_waitcnt vmcnt(0)")
    untag(32, 2, 19); red(20, 32)
    poll_end("L_fp2", "L_fg2")
    stamp(12)
    e("s_nop 0")
    red2([20])
    e("s_branch L_fmath")
    e("L_fgot:")
    stamp(12)
    e("s_nop 0")
    red2([20, 28])
    e("L_fmath:")
    c("out = bf16(x + bf16(s * bf16(silu(f))))")
    e("v_cvt_pk_bf16_f32 v20, v28, v20"); e("v_and_b32 v21, s51, v20"); e("v_lshlrev_b32 v20, 16, v20")
    e("v_mul_f32 v22, s52, v21"); e("v_exp_f32 v22, v22"); e("v_add_f32 v22, 1.0, v22"); e("v_rcp_f32 v22, v22"); e("v_mul_f32 v21, v21, v22")
    e("v_cvt_pk_bf16_f32 v21, v21, v21"); e("v_and_b32 v21, s51, v21")
    e("v_mul_f32 v20, v20, v21"); e("v_cvt_pk_bf16_f32 v20, v20, v20"); e("v_and_b32 v20, s51, v20")
    e("v_add_f32 v20, v4, v20"); e("v_cvt_pk_bf16_f32 v20, v20, v20")
    e("s_mov_b32 exec_lo, 0x000f000f"); e("s_mov_b32 exec_hi, 0x000f000f")
    e("global_store_short v3, v20, s[24:25]")
    c("every workgroup has read the old tag word by now (all of them fed these partials): leave this launch's tag in it")
    e(f"s_cmp_lg_u32 s2, {diagwg}"); e("s_cbranch_scc1 L_fin")
    e("s_mov_b64 exec, 1"); e("v_mov_b32 v22, s48")
    e(f"global_store_dword v98, v22, s[26:27] offset:{EPOCH}")
    if diag is not None:
        e("s_memrealtime s[60:61]"); e("s_waitcnt lgkmcnt(0)")
        e(f"s_sub_u32 s62, s{64+2*diag}, s64"); e("s_lshl_b32 s62, s62, 3"); e("s_min_u32 s62, s62, 100000")
        e("L_diag:"); e("s_memrealtime s[50:51]"); e("s_waitcnt lgkmcnt(0)"); e("s_sub_u32 s50, s50, s60"); e("s_cmp_lt_u32 s50, s62"); e("s_cbranch_scc1 L_diag")
    e("L_fin:")
    stamp(13)
    dump()
    e("L_end:")
    e("s_endpgm")
    body = pad(L)
    out = HEADER + f"; @launch grid=(256,1,1) block=(576,1,1) lds={LDS_END}\n;\n" + DOC
    out += '.amdgcn_target "amdgcn-amd-amdhsa--gfx950"\n.text\n' + f".globl {KN}\n"
    if align: out += "; never executed: places the entry at the start of a 4 KiB page, so the stream waves' code sits in one page\n.p2align 12\n.fill 832, 4, 0xbf800000\n"
    out += f".p2align 8\n.type {KN},@function\n"
    out += "\n".join(x if x.endswith(":") else "    " + x for x in body) + "\n"
    out += f""".section .rodata,"a"
.p2align 6
.amdhsa_kernel {KN}
  .amdhsa_next_free_vgpr 136
  .amdhsa_next_free_sgpr {96 if (stamps or diag is not None) else 64}
  .amdhsa_accum_offset 136
  .amdhsa_group_segment_fixed_size 0
  .amdhsa_kernarg_size 88
  .amdhsa_user_sgpr_count 2
  .amdhsa_user_sgpr_kernarg_segment_ptr 1
  .amdhsa_system_sgpr_workgroup_id_x 1
  .amdhsa_float_denorm_mode_32 3
.end_amdhsa_kernel
"""
    return out
if __name__ == "__main__":
    open(sys.argv[1] if len(sys.argv) > 1 else f"cdna_kernels/{NAME}.s", "w").write(gen())
```

```python
import sys, struct
sys.path.insert(0, "gen")
from asmlib import pad
NAME = "recurrent_scan__sliding_block_cached__dense_activation_silu__decode"
KN = NAME + "_kernel"
def f2u(x): return struct.unpack("<I", struct.pack("<f", x))[0]
XN, ACT, QL, MX, PL, XR, S1T = 0, 1600, 3200, 3776, 3904, 4928, 9728
QZ = QL + 544
S4T = S1T + 41472
VL = S4T + 41472
LDS_END = VL + 65536
assert VL % 256 == 0 and LDS_END <= 163840
PITCH = 400
EPOCH, X1, OX, FX = 0, 4096, 593920, 888832
FXP = 16384 + 256
STAMP = 0x8000000
LOG2E = 1.4426950408889634
DPP = "row_mask:0xf bank_mask:0xf"
HEADER = open(f"cdna_kernels/{NAME}.s.ref").read().split("; Override launch")[0]
DOC = f"""; out = x + (attn(ln(x)) @ wo) * silu(silu(ln(x) @ w1) @ w2), one launch, one workgroup (9 waves) per CU.
;
;
"""

def gen(stamps=False, diag=None, diagwg=0xe0, spin=1 << 20, align=True, help=None, hpol='', hwhen=1, b2d=True, olate=False, emark=False, ftouch=0, gd=True):
    L = []; e = L.append
    def c(t): e("; " + t)
    nlab = [0]
    def lab(p):
        nlab[0] += 1; return f"L_{p}{nlab[0]}"
    def stamp(i):
        if stamps or (diag is not None and i in (0, diag)): e(f"s_memrealtime s[{64+2*i}:{65+2*i}]")
    def dump():
        if not stamps: return
        e("s_waitcnt lgkmcnt(0)")
        l = lab("dl")
        e(f"{l}:"); e("s_sleep 20"); e("s_memrealtime s[50:51]"); e("s_waitcnt lgkmcnt(0)"); e("s_sub_u32 s50, s50, s64"); e("s_cmp_lt_u32 s50, 1600"); e(f"s_cbranch_scc1 {l}")
        e("s_mov_b64 exec, -1")
        e("s_mul_i32 s50, s2, 9"); e("s_add_u32 s50, s50, s3"); e("s_lshl_b32 s50, s50, 6"); e(f"s_add_u32 s50, s50, {STAMP}")
        e("v_mov_b32 v9, s50"); e("s_min_u32 s94, s60, 1"); e("s_getreg_b32 s51, hwreg(HW_REG_XCC_ID, 0, 4)"); e("s_lshl4_add_u32 s94, s51, s94")
        e("s_getreg_b32 s51, hwreg(HW_REG_HW_ID)"); e("s_lshl_b32 s51, s51, 8"); e("s_or_b32 s94, s94, s51"); e("s_mov_b32 s92, s49")
        for i in range(16):
            e(f"v_mov_b32 v10, s{64+2*i}"); e(f"global_store_dword v9, v10, s[26:27] offset:{4*i}")
    def bar(t): e(f"s_barrier                                ; {t}")
    def mfma(d, a, b, first): e(f"v_mfma_f32_16x16x32_bf16 v[{d}:{d+3}], v[{a}:{a+3}], v[{b}:{b+3}], " + ("0" if first else f"v[{d}:{d+3}]"))
    def tags():
        c("s48 = this launch's tag, s44..s47 = its bytes")
        e("s_add_u32 s48, s48, 0x01010101")
        e("s_and_b32 s44, s48, 0xff"); e("s_bfe_u32 s45, s48, 0x80008"); e("s_bfe_u32 s46, s48, 0x80010"); e("s_lshr_b32 s47, s48, 24")
    def emk():
        if not emark: return
        l = lab("em")
        e("s_cmp_lg_u32 s3, 8"); e(f"s_cbranch_scc1 {l}")
        e("s_mov_b64 exec, 1"); e("global_store_byte v8, v10, s[30:31]"); e("s_mov_b64 exec, -1")
        e(f"{l}:")
    def ftch():
        c("stage 4 lines: with a copy in L2 an early look costs a hit instead of a fill that races the writer")
        e("s_cmp_ge_u32 s56, 36"); e("s_cbranch_scc1 L_noft")
        e(f"s_mul_i32 s50, s56, {FXP}"); e("s_and_b32 s54, s57, 1"); e("s_lshl_b32 s54, s54, 13"); e("s_add_u32 s50, s50, s54")
        e("s_and_b32 s54, s57, 2"); e("s_lshl_b32 s54, s54, 6"); e("s_add_u32 s50, s50, s54"); e(f"s_add_u32 s50, s50, {FX}")
        e("v_and_b32 v24, 31, v1"); e("v_lshl_add_u32 v24, v24, 8, s50"); e("s_mov_b32 exec_hi, 0")
        e("global_load_dword v24, v24, s[26:27] sc1"); e("s_mov_b32 exec_hi, -1")
        e("L_noft:")
    def xcd_load():
        e("s_lshl_b32 s50, s4, 4"); e("s_load_dwordx4 s[60:63], s[30:31], s50")
    def xcd_flag():
        c("s60 = 0 iff all 16 workgroups of this group posted this XCD's id")
        e("s_mul_i32 s40, s40, 0x01010101"); e("s_mov_b32 s41, s40")
        e("s_xor_b64 s[60:61], s[60:61], s[40:41]"); e("s_xor_b64 s[62:63], s[62:63], s[40:41]")
        e("s_or_b64 s[60:61], s[60:61], s[62:63]"); e("s_or_b32 s60, s60, s61")
    def gstore(text):
        a, b = lab("near"), lab("sent")
        e(f"s_cbranch_scc0 {a}"); e(text + " sc1"); e(f"s_branch {b}"); e(f"{a}:"); e(text); e(f"{b}:")
    def publish(vSt, mask, group):
        e(f"s_mov_b32 exec_lo, {mask}"); e(f"s_mov_b32 exec_hi, {mask}")
        if group: e("s_cmp_lg_u32 s60, 0"); e("s_nop 4")
        else: e("s_nop 5")
        for r in range(4): e(f"v_bfi_b32 v{120+r}, v11, s{44+r}, v{120+r}")
        st = f"global_store_dwordx4 v{vSt}, v[120:123], s[26:27]"
        if group: gstore(st)
        else: e(st + " sc1")
        e("s_mov_b64 exec, -1")
    def tile_reads(tbase, p0, p1):
        for p in range(p0, p1): e(f"ds_read_b64_tr_b16 v[{80+2*p}:{81+2*p}], v6 offset:{tbase + p*4608}")
    def act_reads(abase, last):
        for s in range(4): e(f"ds_read_b128 v[{100+4*s}:{103+4*s}], v7 offset:{abase + 64*s}")
        if last: e(f"ds_read_b64 v[116:117], v7 offset:{abase + 256}")
    def stage1():
        tile_reads(S1T, 0, 9); act_reads(XN, True)
        for s in range(5):
            e(f"s_waitcnt lgkmcnt({4 - s})"); mfma(120, 80 + 4*s, 100 + 4*s, s == 0)
        publish(8, "0x000f000f", True)
    def untag(base, n, acc):
        for g in range(n):
            for r in range(4): e(f"v_xor_b32 v{base+4*g+r}, s{44+r}, v{base+4*g+r}")
        regs = list(range(base, base + 4*n))
        e(f"v_or3_b32 v{acc}, v{regs[0]}, v{regs[1]}, v{regs[2]}")
        regs = regs[3:]
        while len(regs) >= 2:
            e(f"v_or3_b32 v{acc}, v{acc}, v{regs[0]}, v{regs[1]}"); regs = regs[2:]
        if regs: e(f"v_or_b32 v{acc}, v{acc}, v{regs[0]}")
        e(f"v_and_b32 v{acc}, v11, v{acc}")
        e(f"v_cmp_ne_u32 vcc, 0, v{acc}")
    def poll_end(top, out):
        e(f"s_cbranch_vccz {out}")
        e("s_sub_u32 s49, s49, 1"); e(f"s_cbranch_scc0 {top}")
        e("s_mov_b32 s49, 0")
        e(f"{out}:")
    def rscat(bs):
        for b in bs: e(f"v_permlane32_swap_b32 v{b}, v{b+2}"); e(f"v_permlane32_swap_b32 v{b+1}, v{b+3}")
        for b in bs: e(f"v_pk_add_f32 v[{b}:{b+1}], v[{b}:{b+1}], v[{b+2}:{b+3}]")
        for b in bs: e(f"v_permlane16_swap_b32 v{b}, v{b+1}")
        for b in bs: e(f"v_add_f32 v{b}, v{b}, v{b+1}")
    def tile_addrs():
        c("v6 tile read address, v7 activation read address, v8 / v15 where stage 1 / stage 3 results go")
        e("v_mov_b32 v11, 0xff")
        e("v_mov_b32 v98, 0"); e("v_mov_b32 v99, 0"); e("v_mov_b32 v118, 0"); e("v_mov_b32 v119, 0")
        e(f"s_mov_b32 s49, {spin}")
        e("v_lshrrev_b32 v6, 2, v1"); e("v_mul_u32_u24 v6, 288, v6"); e("v_lshl_add_u32 v6, v12, 3, v6")
        e("s_lshl_b32 s50, s3, 5"); e("v_add_u32 v6, s50, v6")
        e(f"v_mul_u32_u24 v7, {PITCH}, v12"); e("v_lshl_add_u32 v7, v14, 4, v7")
        e("s_lshl_b32 s50, s6, 5"); e("s_add_u32 s50, s50, s7")
        e("s_mul_i32 s51, s50, 9216"); e("s_lshl_b32 s52, s3, 10"); e("s_add_u32 s51, s51, s52")
        e("s_lshl_b32 s52, s28, 8"); e("s_add_u32 s51, s51, s52"); e(f"s_add_u32 s51, s51, {X1}")
        e("v_lshlrev_b32 v8, 4, v14"); e("v_lshl_add_u32 v15, v12, 6, v8"); e("v_add_u32 v8, s51, v15")
        e("s_mul_i32 s51, s28, 9"); e("s_add_u32 s51, s51, s3"); e(f"s_mul_i32 s51, s51, {FXP}"); e("s_lshl_b32 s50, s50, 8")
        e("s_add_u32 s51, s51, s50"); e(f"s_add_u32 s51, s51, {FX}"); e("v_add_u32 v15, s51, v15")
    def h_addrs():
        c("type 0: v128 this wave's 16 columns of the hidden partials, v129 where their activations go in LDS")
        e("s_mul_i32 s50, s7, 9"); e("s_add_u32 s50, s50, s3"); e("s_lshl_b32 s50, s50, 10"); e(f"s_add_u32 s50, s50, {X1}")
        e("v_lshl_add_u32 v128, v1, 4, s50")
        e("s_lshr_b32 s50, s3, 1"); e("s_lshl_b32 s50, s50, 6"); e("s_and_b32 s54, s3, 1"); e("s_lshl3_add_u32 s50, s54, s50")
        e("v_bfe_u32 v129, v1, 2, 2"); e(f"v_mul_u32_u24 v129, {PITCH}, v129"); e("v_lshl_add_u32 v129, v12, 4, v129")
        e("v_lshl_add_u32 v129, v14, 1, v129"); e("v_add_u32 v129, s50, v129")
    def helper():
        if help is None: return
        heavy = [k for k in range(32) if any(((288*k)//128 + i) % 8 == 3 for i in range(3))]
        tab = 0
        for x in range(8):
            hs = [k & 3 for k in heavy if k >> 2 == x]
            assert len(hs) == 1 + (x & 1)
            for u, k in enumerate(hs): tab |= k << (4*x + 2*u)
        c("type 1 workgroups with a cheap first tile pull 81 lines of w2 into L2 for a type 0 neighbour with a costly one")
        e("s_and_b32 s50, s7, 3"); e("s_cmp_eq_u32 s50, 1"); e("s_cselect_b32 s50, 0, s6"); e("s_cmp_eq_u32 s50, 0"); e("s_cbranch_scc1 L_nohelp")
        e("s_and_b32 s50, s7, 15"); e("s_lshl_b32 s50, s50, 1"); e(f"s_lshr_b32 s50, {hex(tab)}, s50"); e("s_and_b32 s50, s50, 3")
        e("s_and_b32 s54, s2, 7"); e("s_lshl2_add_u32 s50, s54, s50"); e("s_mul_i32 s50, s50, 165888")
        e("s_lshr_b32 s54, s4, 3"); e("s_lshl2_add_u32 s54, s54, s28"); e("s_mul_i32 s54, s54, 10368"); e("s_add_u32 s50, s50, s54")
        if help: e(f"s_add_u32 s50, s50, {help*1152}")
        e("v_lshl_add_u32 v22, v1, 7, s50"); e("v_min_u32 v23, 16, v1"); e("v_lshl_add_u32 v23, v23, 7, s50"); e("v_add_u32 v23, 8192, v23")
        e(f"global_load_dword v22, v22, s[22:23] {hpol}"); e(f"global_load_dword v23, v23, s[22:23] {hpol}")
        e("L_nohelp:")
    def s4load(n):
        e("s_mov_b32 exec_hi, 0x003fffff")
        for t in range(n):
            e("buffer_load_dwordx4 v3, s[36:39], s58 offen nt lds")
            e("s_add_u32 m0, m0, 6912"); e("s_add_u32 s58, s58, 27648")
        e("s_mov_b32 exec_hi, -1")
    def kload(t):
        for r in range(4): e(f"global_load_dwordx4 v[{16+16*t+4*r}:{19+16*t+4*r}], v4, s[10:11] offset:{256*r} nt")
    def vload():
        for r in range(4): e(f"global_load_lds_dwordx4 v{4 if r & 1 else 5}, s[12:13] offset:{1024*r} nt")
    def oproc():
        e("v_pk_mul_f32 v[20:21], v[20:21], v[28:29]"); e("v_pk_mul_f32 v[22:23], v[22:23], v[28:29]")
        for sh in (8, 4):
            for r in range(4): e(f"v_add_f32_dpp v{20+r}, v{20+r}, v{20+r} row_ror:{sh} {DPP}")
        e("v_cvt_pk_bf16_f32 v20, v20, v21"); e("v_cvt_pk_bf16_f32 v21, v22, v23")
        e(f"ds_write_b64 v129, v[20:21] offset:{ACT}")
        e("s_waitcnt lgkmcnt(0)")

    e(f"{KN}:")
    stamp(0)
    e("s_load_dwordx16 s[8:23], s[0:1], 0")
    e("s_load_dwordx2 s[24:25], s[0:1], 64     ; out")
    e("s_load_dwordx2 s[26:27], s[0:1], 80     ; ws")
    e("s_load_dwordx2 s[30:31], s[0:1], 72     ; debug")
    e("s_cmp_ge_u32 s2, 256"); e("s_cbranch_scc1 L_end")
    e("v_lshrrev_b32 v2, 6, v0"); e("v_and_b32 v1, 63, v0")
    e("v_readfirstlane_b32 s3, v2")
    e("s_and_b32 s4, s2, 15                    ; hkv")
    e("s_lshr_b32 s5, s2, 4                    ; j")
    e("s_lshr_b32 s6, s2, 7                    ; type")
    e("s_bfe_u32 s29, s2, 0x10006")
    e("s_lshl1_add_u32 s7, s4, s29")
    e("s_and_b32 s28, s5, 3")
    e("s_getreg_b32 s40, hwreg(HW_REG_XCC_ID, 0, 4)"); e("s_bitset1_b32 s40, 7")
    e("v_lshlrev_b32 v13, 4, v1")
    e("s_sub_u32 s3, s3, 1"); e("s_cbranch_scc0 L_stream")
    c("---- service wave, head: pull the code into L2, post the XCD id, fetch x into LDS ----")
    e("s_mov_b32 s3, 8")
    e("s_getpc_b64 s[52:53]"); e("L_pc:")
    e("v_lshlrev_b32 v4, 7, v1"); e("v_min_u32 v4, L_end-L_pc, v4")
    e("global_load_dword v5, v4, s[52:53]")
    e(f"s_mov_b32 m0, {XR}"); e("v_add_u32 v4, 4096, v13")
    e("s_lshl4_add_u32 s53, s4, s5"); e("v_mov_b32 v7, s53"); e("v_mov_b32 v6, s40")
    e("s_and_b32 s53, s53, 0xc0"); e("s_xor_b32 s53, s53, 64"); e("s_mov_b64 exec, 1")
    e("s_waitcnt lgkmcnt(0)")
    e(f"s_load_dword s48, s[26:27], {EPOCH}")
    e("s_load_dword s42, s[30:31], s53")
    e("global_store_byte v7, v6, s[30:31]"); e("s_mov_b64 exec, -1")
    for i in range(4): e(f"global_load_lds_dwordx4 v13, s[8:9] offset:{1024*i}")
    e(f"s_mov_b32 m0, {XR + 4096}"); e("s_mov_b32 exec_hi, 0")
    e("global_load_lds_dwordx4 v4, s[8:9]")
    e("s_mov_b32 exec_hi, -1")
    e("s_branch L_service")

    e("L_stream:")
    c("---- stream waves: first tile -> LDS, 3 rows of 288 bytes pitch per load ----")
    e("s_and_b32 s50, s2, 7"); e("s_lshr_b32 s51, s4, 3"); e("s_lshl1_add_u32 s50, s50, s51"); e("s_lshl1_add_u32 s50, s50, s29")
    e("s_cmp_lg_u32 s6, 0"); e("s_cselect_b32 s43, s7, s50")
    e("s_sub_u32 s51, 9, s6")
    e("s_mul_i32 s59, s51, 18432")
    e("s_lshl_b32 s50, s51, 10")
    e("s_mul_i32 s34, s51, 589824")
    e("s_lshl_b32 s51, s51, 5")
    e("s_mov_b32 s35, 0x20000")
    e("s_mul_i32 s51, s51, s43")
    e("s_mul_i32 s52, s28, 48"); e("s_add_u32 s52, s52, s3"); e("s_mul_i32 s52, s52, s50"); e("s_mul_i32 s52, s52, 3"); e("s_add_u32 s42, s51, s52")
    e("v_mul_u32_u24 v9, 57, v1"); e("v_lshrrev_b32 v9, 10, v9                ; lane / 18")
    e("v_mul_u32_u24 v10, 288, v9"); e("v_sub_u32 v10, v13, v10                 ; (lane % 18) * 16")
    e("v_mad_u32_u24 v2, v9, s50, v10")
    e("s_mul_i32 s56, s50, 24")
    e("s_mul_i32 s57, s3, 864")
    e(f"s_add_u32 m0, s57, {S1T}")
    e("s_cmp_lg_u32 s6, 0")
    e("s_cselect_b32 s55, 0, 0x0030000c"); e("s_or_b32 exec_hi, s55, 0x000ffff3")
    e("s_cmp_lg_u32 s6, 0")
    e("s_cselect_b32 exec_lo, 0xfffcffff, -1")
    e("s_waitcnt lgkmcnt(0)")
    e("s_cselect_b64 s[32:33], s[14:15], s[20:21]")
    e("s_cselect_b64 s[36:37], s[16:17], s[22:23]")
    stamp(1)
    for t in range(6):
        e("buffer_load_dwordx4 v2, s[32:35], s42 offen nt lds")
        if t < 5: e("s_add_u32 m0, m0, 6912"); e("s_add_u32 s42, s42, s56")
    e("s_mov_b64 exec, -1")
    e(f"s_load_dword s48, s[26:27], {EPOCH}")
    c("K / V: two 16-key blocks per wave; the block order is rotated per workgroup to spread the HBM stacks")
    e("s_lshr_b32 s50, s5, 2"); e("s_lshl_b32 s50, s50, 24"); e("s_lshl_b32 s51, s4, 20"); e("s_add_u32 s50, s50, s51")
    e("s_lshl_b32 s51, s28, 16"); e("s_add_u32 s50, s50, s51")
    e("s_xor_b32 s51, s5, s4"); e("s_xor_b32 s51, s51, s3"); e("s_lshl_b32 s51, s51, 12"); e("s_add_u32 s50, s50, s51")
    e("s_add_u32 s50, s50, 786432")
    e("v_and_b32 v12, 3, v1"); e("v_lshrrev_b32 v14, 4, v1")
    e("v_lshlrev_b32 v5, 5, v14"); e("v_xor_b32 v5, v5, v13"); e("v_add_u32 v5, s50, v5")
    e("v_bfe_u32 v13, v1, 2, 2")
    e("v_lshl_add_u32 v4, v13, 10, s50"); e("v_lshl_add_u32 v4, v14, 6, v4"); e("v_lshl_add_u32 v4, v12, 4, v4           ; K source")
    e("s_mul_i32 s51, s59, s43"); e("s_add_u32 s38, s51, s59"); e("s_mov_b32 s39, 0x20000")
    e("s_mul_i32 s52, s28, 288"); e("s_add_u32 s51, s51, s52"); e("s_mul_i32 s52, s3, 3456"); e("s_add_u32 s58, s51, s52")
    e("v_mul_u32_u24 v3, 1152, v9"); e("v_add_u32 v3, v3, v10")
    tile_addrs()
    e("s_waitcnt vmcnt(2)")
    kload(0)
    xcd_load()
    e("v_xor_b32 v4, 0x8000, v4")
    e("s_waitcnt lgkmcnt(0)")
    tags(); xcd_flag()
    e("s_waitcnt vmcnt(4)")
    stamp(2)
    bar("B1: xn and the first tile are in LDS")
    stamp(3)
    stage1()
    e(f"v_add_u32 v6, {S4T}, v6")
    bar("B1b: stage 1 stores are issued")
    stamp(4)
    e("s_waitcnt vmcnt(3)")
    kload(1)
    c("v8 / v9 q fragments for block 0 / 1 (zeros in the other block's columns), v2 P slot, v10 max slot")
    e("v_bfe_u32 v10, v1, 2, 1")
    e("v_mul_u32_u24 v9, 272, v10"); e("v_lshl_add_u32 v9, v14, 6, v9"); e("v_lshl_add_u32 v9, v12, 4, v9")
    e("v_and_b32 v2, 8, v1"); e("v_cmp_eq_u32 vcc, 0, v2"); e(f"v_mov_b32 v4, {QZ - QL}")
    e("v_cndmask_b32 v8, v4, v9, vcc"); e("v_cndmask_b32 v9, v9, v4, vcc")
    e("s_lshr_b32 s50, s3, 1"); e("s_lshl_b32 s50, s50, 7"); e("s_and_b32 s51, s3, 1"); e("s_lshl3_add_u32 s50, s51, s50")
    e("v_lshl_add_u32 v2, v2, 6, s50"); e("v_lshl_add_u32 v2, v14, 5, v2"); e("v_lshl_add_u32 v2, v10, 4, v2")
    e("v_lshlrev_b32 v10, 2, v10")
    c("v124 V read address, v125 P read address, v126 where this wave's 16 columns of O go")
    e("v_lshrrev_b32 v124, 2, v1"); e("v_and_b32 v125, 7, v124"); e("v_xor_b32 v125, s3, v125")
    e("v_lshlrev_b32 v124, 8, v124"); e("v_lshl_add_u32 v124, v125, 5, v124"); e("v_lshl_add_u32 v124, v12, 3, v124"); e(f"v_add_u32 v124, {VL}, v124")
    e("v_and_b32 v126, 1, v1"); e("v_lshlrev_b32 v125, 5, v14"); e("v_lshl_add_u32 v125, v126, 4, v125")
    e("s_lshl4_add_u32 s50, s4, s5"); e("s_mul_i32 s50, s50, 1152"); e("s_lshl_b32 s51, s3, 6"); e("s_add_u32 s50, s50, s51"); e(f"s_add_u32 s50, s50, {OX}")
    e("v_lshl_add_u32 v126, v126, 9, s50"); e("v_lshl_add_u32 v126, v14, 4, v126")
    e("s_lshl_b32 s53, s3, 12"); e(f"s_add_u32 m0, s53, {VL}")
    e("v_xor_b32 v4, 0x80, v5")
    e("s_waitcnt vmcnt(2)")
    vload()
    e("s_add_u32 m0, m0, 32768")
    e("v_xor_b32 v5, 0x8000, v5"); e("v_xor_b32 v4, 0x8000, v4")
    c("type 1: wave = (batch, half of d), lane = (16 columns, chunk, 4 columns): v128 O, v127 (max, sum), v129 LDS slot")
    e("s_lshr_b32 s50, s3, 1"); e("s_and_b32 s51, s3, 1")
    e("s_lshl2_add_u32 s53, s4, s50"); e("s_mul_i32 s53, s53, 4608"); e(f"s_add_u32 s53, s53, {OX}")
    e("s_lshl4_add_u32 s54, s29, s53"); e("v_lshl_add_u32 v127, v13, 5, s54")
    e("s_cmp_eq_u32 s6, 0"); e("s_cbranch_scc1 L_addrA")
    e("s_lshl1_add_u32 s55, s29, s51"); e("s_lshl_b32 s55, s55, 8"); e("s_add_u32 s53, s53, s55")
    e("v_mul_u32_u24 v128, 1152, v13"); e("v_lshl_add_u32 v128, v14, 6, v128"); e("v_lshl_add_u32 v128, v12, 4, v128"); e("v_add_u32 v128, s53, v128")
    e(f"s_mul_i32 s50, s50, {PITCH}"); e("s_lshl_b32 s51, s51, 7"); e("s_add_u32 s50, s50, s51")
    e("v_lshrrev_b32 v13, 5, v1"); e("v_lshl_add_u32 v129, v13, 6, s50"); e("v_lshl_add_u32 v129, v12, 4, v129")
    e("v_and_b32 v13, 1, v14"); e("v_lshl_add_u32 v129, v13, 3, v129")
    e("s_waitcnt vmcnt(2)")
    e("s_branch L_v1")
    e("L_addrA:")
    h_addrs()
    e("s_waitcnt vmcnt(2)")
    e("global_load_dwordx4 v[100:103], v128, s[26:27] sc1")
    e("L_v1:")
    vload()
    e(f"s_add_u32 m0, s57, {S4T}")
    e(f"s_mov_b32 s54, {hex(f2u(128 ** -0.5))}"); e("s_mov_b32 s51, 0xffff0000"); e(f"s_mov_b32 s52, {hex(f2u(LOG2E))}")
    stamp(5)
    bar("B2: q is in LDS")
    stamp(6)
    c("scores: rows (key, quarter of d) x columns (block, head, quarter of d); the diagonal quarters are summed")
    e(f"ds_read_b128 v[48:51], v8 offset:{QL}"); e(f"ds_read_b128 v[52:55], v9 offset:{QL}")
    e("s_waitcnt lgkmcnt(1)")
    for r in range(4): mfma(56 + 4*r, 16 + 4*r, 48, True)
    e("s_waitcnt lgkmcnt(0)")
    for r in range(4): mfma(56 + 4*r, 32 + 4*r, 52, False)
    for q in (1, 2, 3):
        for r in range(4):
            e(f"v_add_f32_dpp v{72+r}, v{56+4*r+q}, v{56+4*r if q == 1 else 72+r} quad_perm:[{q},{q},{q},{q}] {DPP}")
    def rnd():
        for p in range(2): e(f"v_cvt_pk_bf16_f32 v{76+p}, v{72+2*p}, v{73+2*p}")
        for p in range(2):
            e(f"v_lshlrev_b32 v{72+2*p}, 16, v{76+p}"); e(f"v_and_b32 v{73+2*p}, s51, v{76+p}")
    c("bf16(bf16(q.k) * 128^-0.5), as the reference rounds them")
    rnd()
    for p in range(2): e(f"v_pk_mul_f32 v[{72+2*p}:{73+2*p}], v[{72+2*p}:{73+2*p}], s[54:55] op_sel_hi:[1,0]")
    rnd()
    e("v_max3_f32 v76, v72, v73, v74"); e("v_max_f32 v76, v76, v75")
    e("s_mov_b32 exec_lo, 0x11111111"); e("s_mov_b32 exec_hi, 0x11111111")
    e(f"ds_max_f32 v10, v76 offset:{MX}")
    e("s_waitcnt lgkmcnt(0)")
    bar("B2b: the chunk's maxima are in LDS")
    e(f"ds_read_b32 v56, v10 offset:{MX}")
    e("s_waitcnt lgkmcnt(0)")
    for p in range(2): e(f"v_pk_add_f32 v[{72+2*p}:{73+2*p}], v[{72+2*p}:{73+2*p}], v[56:57] op_sel_hi:[1,0] neg_lo:[0,1] neg_hi:[0,1]")
    for p in range(2): e(f"v_pk_mul_f32 v[{72+2*p}:{73+2*p}], v[{72+2*p}:{73+2*p}], s[52:53] op_sel_hi:[1,0]")
    for i in range(4): e(f"v_exp_f32 v{72+i}, v{72+i}")
    e("v_cvt_pk_bf16_f32 v76, v72, v73"); e("v_cvt_pk_bf16_f32 v77, v74, v75")
    e(f"ds_write_b64 v2, v[76:77] offset:{PL}")
    e("s_mov_b64 exec, -1")
    e("s_cmp_eq_u32 s6, 0")
    e("s_waitcnt vmcnt(5) lgkmcnt(0)")
    e("s_cbranch_scc1 L_b2c"); e("s_waitcnt vmcnt(4)"); e("L_b2c:")
    bar("B2c: P and the first half of V are in LDS")
    stamp(7)
    c("O[16 columns of this wave] over all 256 keys of the chunk")
    for a in range(4):
        e(f"ds_read_b128 v[{16+4*a}:{19+4*a}], v125 offset:{PL + 128*a}")
        for x in range(2): e(f"ds_read_b64_tr_b16 v[{48+4*a+2*x}:{49+4*a+2*x}], v124 offset:{(2*a+x)*4096}")
    for a in range(4):
        e(f"s_waitcnt lgkmcnt({9-3*a})"); mfma(120, 48 + 4*a, 16 + 4*a, a == 0)
    for a in range(4): e(f"ds_read_b128 v[{32+4*a}:{35+4*a}], v125 offset:{PL + 512 + 128*a}")
    if b2d: bar("B2d: the (max, sum) store is ahead of the tile loads")
    s4load(3)
    e("s_waitcnt vmcnt(3) lgkmcnt(0)")
    stamp(8)
    bar("B3: the second half of V is in LDS")
    for a in range(4):
        for x in range(2): e(f"ds_read_b64_tr_b16 v[{64+4*a+2*x}:{65+4*a+2*x}], v124 offset:{32768 + (2*a+x)*4096}")
    for a in range(4):
        e(f"s_waitcnt lgkmcnt({6-2*a})"); mfma(120, 64 + 4*a, 32 + 4*a, False)
    publish(126, "0x00030003", True)
    stamp(9)
    bar("B3b: every O store is ahead of the remaining tile loads")
    e("s_cmp_eq_u32 s6, 0"); e("s_cbranch_scc1 L_tailA")
    c("---- type 1: merge the four chunks of every batch, then wo ----")
    e("global_load_dwordx4 v[24:27], v127, s[26:27] offset:1024 sc1")
    s4load(3)
    e("s_waitcnt vmcnt(3)")
    stamp(1)
    if not olate: e("global_load_dwordx4 v[20:23], v128, s[26:27] sc1")
    e("L_b3c:")
    bar("B3c: tile rows 0..71 are in LDS")
    tile_reads(0, 0, 4)
    e("s_cmp_eq_u32 s3, 8"); e("s_cbranch_scc1 L_b4")
    e("s_branch L_mchk")
    e("L_mpoll:")
    e("global_load_dwordx4 v[24:27], v127, s[26:27] offset:1024 sc1")
    e("s_waitcnt vmcnt(0)")
    e("L_mchk:")
    untag(24, 1, 28)
    poll_end("L_mpoll", "L_mgot")
    c("v28 = v29 = exp(m_c - M) / sum_c exp(m_c - M) l_c")
    e(f"v_max_f32_dpp v28, v24, v24 row_ror:4 {DPP}"); e(f"v_max_f32_dpp v28, v28, v28 row_ror:8 {DPP}")
    e("v_sub_f32 v28, v24, v28"); e("v_mul_f32 v28, s52, v28"); e("v_exp_f32 v28, v28")
    e("v_mul_f32 v25, v25, v28")
    e(f"v_add_f32_dpp v25, v25, v25 row_ror:8 {DPP}"); e(f"v_add_f32_dpp v25, v25, v25 row_ror:4 {DPP}")
    e("v_rcp_f32 v25, v25")
    e("v_mul_f32 v28, v28, v25"); e("v_mov_b32 v29, v28")
    if olate: e("global_load_dwordx4 v[20:23], v128, s[26:27] sc1")
    if stamps: e("s_waitcnt vmcnt(1)"); stamp(10)
    e("s_branch L_ochk")
    e("L_opoll:")
    e("global_load_dwordx4 v[20:23], v128, s[26:27] sc1")
    e("L_ochk:")
    e("s_waitcnt vmcnt(0)")
    untag(20, 1, 30)
    poll_end("L_opoll", "L_ogot")
    oproc()
    stamp(11)
    e("L_b4:")
    bar("B4: o and the whole second tile are in LDS")
    emk()
    stamp(12)
    e(f"ds_read_b128 v[100:103], v7 offset:{ACT}"); e(f"ds_read_b128 v[104:107], v7 offset:{ACT + 64}")
    for s in (2, 3):
        e(f"ds_read_b128 v[{100+4*s}:{103+4*s}], v7 offset:{ACT + 64*s}"); tile_reads(0, 2*s, 2*s + 2)
    for s, w in enumerate((7, 6, 3, 0)):
        e(f"s_waitcnt lgkmcnt({w})"); mfma(120, 80 + 4*s, 100 + 4*s, s == 0)
    e("L_pub:")
    publish(15, "0x000f000f", False)
    e("s_cmp_eq_u32 s3, 8"); e("s_cbranch_scc1 L_final")
    stamp(13)
    dump()
    e("s_endpgm")
    c("---- type 0: silu of the summed hidden partials, then w2 ----")
    e("L_tailA:")
    s4load(3)
    e("s_branch L_hchk")
    e("L_hpoll:")
    e("global_load_dwordx4 v[100:103], v128, s[26:27] sc1")
    e("s_waitcnt vmcnt(0)")
    e("L_hchk:")
    untag(100, 1, 104)
    poll_end("L_hpoll", "L_hgot")
    rscat([100])
    e("v_cvt_pk_bf16_f32 v100, v100, v100"); e("v_and_b32 v100, 0xffff0000, v100")
    e(f"v_mul_f32 v101, {hex(f2u(-LOG2E))}, v100"); e("v_exp_f32 v101, v101"); e("v_add_f32 v101, 1.0, v101"); e("v_rcp_f32 v101, v101")
    e("v_mul_f32 v100, v100, v101"); e("v_cvt_pk_bf16_f32 v100, v100, v100")
    e(f"ds_write_b16 v129, v100 offset:{ACT}")
    e("s_waitcnt vmcnt(3) lgkmcnt(0)")
    stamp(1)
    bar("B3c: the activations and tile rows 0..71 are in LDS")
    act_reads(ACT, True)
    tile_reads(0, 0, 4)
    e("s_waitcnt lgkmcnt(0)")
    for s in range(2): mfma(120, 80 + 4*s, 100 + 4*s, s == 0)
    e("s_waitcnt vmcnt(0)")
    stamp(10)
    bar("B4a: the second tile is in LDS")
    emk()
    stamp(12)
    tile_reads(0, 4, 9)
    for s in range(2, 5):
        e(f"s_waitcnt lgkmcnt({max(7 - 2*s, 0)})"); mfma(120, 80 + 4*s, 100 + 4*s, False)
    e("s_branch L_pub")

    c("---- service wave ----")
    e("L_service:")
    e("v_lshrrev_b32 v14, 4, v1"); e("v_and_b32 v12, 3, v1"); e("v_and_b32 v13, 15, v1")
    e("v_mul_u32_u24 v2, 1152, v14"); e("v_lshl_add_u32 v2, v13, 3, v2")
    e("s_mul_i32 s50, s28, 288"); e("v_add_u32 v16, s50, v2")
    c("stage 4 role: s56 tile of 16 output columns (< 36), s57 batch; v3 byte offset of this lane's output")
    e("s_xor_b32 s50, s2, 0xe0")
    e("s_and_b32 s56, s50, 7"); e("s_lshr_b32 s51, s50, 5"); e("s_lshl3_add_u32 s56, s51, s56"); e("s_bfe_u32 s57, s50, 0x20003")
    e("s_mul_i32 s51, s57, 1152"); e("s_lshl_b32 s52, s56, 5"); e("s_add_u32 s51, s51, s52")
    e("v_lshl_add_u32 v3, v12, 3, s51"); e("v_lshl_add_u32 v3, v14, 1, v3")
    tile_addrs()
    e(f"ds_write_b64 v98, v[98:99] offset:{QZ}"); e(f"ds_write_b64 v98, v[98:99] offset:{QZ+8}")
    e("v_mov_b32 v20, 0xff800000"); e("v_mov_b32 v21, v20"); e(f"ds_write_b64 v98, v[20:21] offset:{MX}")
    e("s_mov_b32 s51, 0xffff0000")
    e(f"v_mul_u32_u24 v9, {PITCH}, v14"); e("v_bfe_u32 v10, v1, 3, 1"); e("v_lshl_add_u32 v9, v10, 6, v9"); e("v_lshl_add_u32 v9, v12, 4, v9")
    e("v_bfe_u32 v10, v1, 2, 1"); e("v_lshl_add_u32 v9, v10, 3, v9")
    stamp(1)
    e("s_waitcnt vmcnt(0)")
    stamp(2)
    c("layernorm: 16 lanes per batch row, two passes, rounded to bf16 where the reference rounds")
    for i in range(3): e(f"ds_read_b64 v[{34+2*i}:{35+2*i}], v16 offset:{XR + 128*i}")
    for i in range(9): e(f"ds_read_b64 v[{16+2*i}:{17+2*i}], v2 offset:{XR + 128*i}")
    e(f"ds_read_u16 v4, v3 offset:{XR}")
    e("s_waitcnt lgkmcnt(0)")
    for k in range(18):
        e(f"v_lshlrev_b32 v{40+2*k}, 16, v{16+k}"); e(f"v_and_b32 v{41+2*k}, s51, v{16+k}")
    e("v_pk_add_f32 v[76:77], v[40:41], v[42:43]"); e("v_pk_add_f32 v[78:79], v[44:45], v[46:47]")
    for k in range(4, 18): e(f"v_pk_add_f32 v[{76+2*(k&1)}:{77+2*(k&1)}], v[{76+2*(k&1)}:{77+2*(k&1)}], v[{40+2*k}:{41+2*k}]")
    def rowsum():
        e("v_pk_add_f32 v[76:77], v[76:77], v[78:79]"); e("v_add_f32 v76, v76, v77")
        for sh in (8, 4, 2, 1): e(f"v_add_f32_dpp v76, v76, v76 row_ror:{sh} {DPP}")
    rowsum()
    e(f"v_mul_f32 v16, {hex(f2u(-1.0/576))}, v76"); e("v_mov_b32 v17, v16")
    for k in range(18): e(f"v_pk_add_f32 v[{40+2*k}:{41+2*k}], v[{40+2*k}:{41+2*k}], v[16:17]")
    e("v_pk_mul_f32 v[76:77], v[40:41], v[40:41]"); e("v_pk_mul_f32 v[78:79], v[42:43], v[42:43]")
    for k in range(2, 18): e(f"v_pk_fma_f32 v[{76+2*(k&1)}:{77+2*(k&1)}], v[{40+2*k}:{41+2*k}], v[{40+2*k}:{41+2*k}], v[{76+2*(k&1)}:{77+2*(k&1)}]")
    rowsum()
    e(f"v_mul_f32 v18, {hex(f2u(1.0/576))}, v76")
    e("v_cvt_pk_bf16_f32 v18, v16, v18"); e("v_lshlrev_b32 v16, 16, v18"); e("v_and_b32 v18, s51, v18")
    e(f"v_add_f32 v18, {hex(f2u(1e-5))}, v18"); e("v_cvt_pk_bf16_f32 v18, v18, v18"); e("v_and_b32 v18, s51, v18")
    e("v_sqrt_f32 v18, v18"); e("v_mov_b32 v17, v16"); e("v_cvt_pk_bf16_f32 v18, v18, v18"); e("v_and_b32 v18, s51, v18")
    e("v_rcp_f32 v18, v18")
    e("v_mov_b32 v19, v18")
    for k in range(6):
        e(f"v_lshlrev_b32 v{40+2*k}, 16, v{34+k}"); e(f"v_and_b32 v{41+2*k}, s51, v{34+k}")
    for k in range(6): e(f"v_pk_add_f32 v[{40+2*k}:{41+2*k}], v[{40+2*k}:{41+2*k}], v[16:17]")
    for k in range(6): e(f"v_cvt_pk_bf16_f32 v{34+k}, v{40+2*k}, v{41+2*k}")
    for k in range(6):
        e(f"v_lshlrev_b32 v{40+2*k}, 16, v{34+k}"); e(f"v_and_b32 v{41+2*k}, s51, v{34+k}")
    for k in range(6): e(f"v_pk_mul_f32 v[{40+2*k}:{41+2*k}], v[{40+2*k}:{41+2*k}], v[18:19]")
    for k in range(6): e(f"v_cvt_pk_bf16_f32 v{34+k}, v{40+2*k}, v{41+2*k}")
    for i in range(3): e(f"ds_write_b64 v9, v[{34+2*i}:{35+2*i}] offset:{XN + 128*i}")
    c("v16..v19 the q partials of this batch, v9 where q goes in LDS")
    e("s_mul_i32 s50, s4, 18432"); e("s_lshr_b32 s52, s5, 2"); e("s_lshl_b32 s52, s52, 6"); e("s_add_u32 s50, s50, s52"); e(f"s_add_u32 s50, s50, {X1 + 32*9216}")
    e("v_bfe_u32 v10, v1, 2, 2")
    e("v_lshl_add_u32 v16, v10, 10, s50"); e("v_lshl_add_u32 v16, v14, 8, v16"); e("v_lshl_add_u32 v16, v12, 4, v16")
    e("v_add_u32 v17, 4096, v16"); e("v_add_u32 v18, 9216, v16"); e("v_add_u32 v19, 13312, v16")
    e("v_lshlrev_b32 v9, 3, v13"); e("v_lshl_add_u32 v9, v14, 1, v9")
    c("v5: lines that later hand-offs write (own and type 0 partner's O record, the partner's hidden partials); type 1")
    c("loads them once so that the later stores and gathers find them in L2")
    e("s_lshl4_add_u32 s50, s4, s5"); e("s_mul_i32 s53, s50, 1152"); e(f"s_add_u32 s53, s53, {OX}")
    e(f"s_sub_u32 s50, s53, {8*1152 + 9*128}"); e("v_mov_b32 v20, s50"); e("v_mov_b32 v21, s53")
    e("v_cmp_gt_u32 vcc, 9, v1"); e("v_cndmask_b32 v5, v20, v21, vcc"); e("v_lshl_add_u32 v5, v1, 7, v5")
    e("s_mul_i32 s50, s7, 9216"); e("s_lshl_b32 s52, s28, 8"); e("s_add_u32 s50, s50, s52"); e(f"s_add_u32 s50, s50, {X1 - 9*1024}")
    e("v_min_u32 v20, 35, v1"); e("v_lshrrev_b32 v21, 1, v20"); e("v_lshl_add_u32 v21, v21, 10, s50"); e("v_and_b32 v20, 1, v20"); e("v_lshl_add_u32 v21, v20, 7, v21")
    e("v_cmp_gt_u32 vcc, 18, v1"); e("v_cndmask_b32 v5, v21, v5, vcc")
    e("v_mul_lo_u32 v5, v5, s6")
    e("s_waitcnt lgkmcnt(0)")
    xcd_load()
    tags()
    e("s_waitcnt lgkmcnt(0)")
    xcd_flag()
    stamp(3)
    bar("B1")
    e("s_cmp_lg_u32 s6, 0"); e("s_cbranch_scc1 L_nos1")
    stage1()
    e("L_nos1:")
    bar("B1b")
    c("returns after this CU's stage 1 stores went out, so the q gather does not run into them")
    if hwhen == 2: helper()
    if ftouch == 2: ftch()
    e("global_load_dword v5, v5, s[26:27] sc1")
    e("s_waitcnt vmcnt(0)")
    stamp(4)
    e("L_qpoll:")
    for i in range(4): e(f"global_load_dwordx4 v[{60+4*i}:{63+4*i}], v{16+i}, s[26:27] sc1")
    e("s_waitcnt vmcnt(0)")
    untag(60, 4, 76)
    poll_end("L_qpoll", "L_qgot")
    stamp(5)
    rscat([60, 64, 68, 72])
    for i in range(4): e(f"v_cvt_pk_bf16_f32 v{60+4*i}, v{60+4*i}, v{60+4*i}")
    for i in range(4): e(f"ds_write_b16 v9, v{60+4*i} offset:{QL + (i>>1)*272 + (i&1)*128}")
    if ftouch == 1: ftch()
    h_addrs()
    e("s_cmp_lg_u32 s6, 0"); e("s_cbranch_scc1 L_noh")
    e("global_load_dwordx4 v[100:103], v128, s[26:27] sc1")
    e("L_noh:")
    if hwhen == 0: helper()
    e("s_waitcnt lgkmcnt(0)")
    stamp(6)
    bar("B2")
    e(f"s_mov_b32 s52, {hex(f2u(-LOG2E))}")
    e("v_and_b32 v17, 1, v1")
    e("s_mul_i32 s50, s28, 1120"); e("s_sub_u32 s53, s53, s50"); e("v_lshl_add_u32 v19, v17, 4, s53")
    e("v_lshlrev_b32 v16, 5, v14"); e("v_lshl_add_u32 v16, v17, 4, v16")
    e("v_lshlrev_b32 v17, 2, v17")
    for r in range(4): e(f"v_mov_b32 v{56+r}, 0x3f803f80")
    e(f"v_add_u32 v6, {S4T}, v6")
    c("v124..v127 the 64 partials of this workgroup's outputs; v8 / v9 its byte and its group's bytes in d_debug")
    e("s_lshl4_add_u32 s50, s4, s5"); e("v_mov_b32 v8, s50"); e("s_andn2_b32 s50, s50, 15"); e("v_or_b32 v9, s50, v13"); e("v_mov_b32 v10, 0x40")
    e(f"s_mul_i32 s50, s56, {FXP}"); e("s_lshl_b32 s53, s57, 6"); e("s_add_u32 s50, s50, s53"); e(f"s_add_u32 s50, s50, {FX}")
    e("v_lshrrev_b32 v124, 2, v1"); e("v_lshl_add_u32 v124, v124, 8, s50"); e("v_lshl_add_u32 v124, v12, 4, v124")
    e("v_add_u32 v125, 4096, v124"); e("v_add_u32 v126, 8192, v124"); e("v_add_u32 v127, 12288, v124")
    e("v_lshlrev_b32 v4, 16, v4")
    e("s_and_b32 s40, s40, 0xff"); e(f"s_movk_i32 s41, {4096 if gd else 0}")
    if hwhen == 1: helper()
    bar("B2b")
    bar("B2c")
    c("row sums of P (ones @ P) and the maxima -> the (max, sum) line of the O record")
    e(f"ds_read_b32 v60, v17 offset:{MX}")
    for k in range(8): e(f"ds_read_b128 v[{64+4*k}:{67+4*k}], v16 offset:{PL + 128*k}")
    for k in range(8):
        e(f"s_waitcnt lgkmcnt({7-k})"); mfma(120, 56, 64 + 4*k, k == 0)
    e("v_bfi_b32 v62, v11, s46, v60"); e("v_bfi_b32 v60, v11, s44, v60")
    e("v_bfi_b32 v61, v11, s45, v120"); e("v_bfi_b32 v63, v11, s47, v120")
    e("s_mov_b64 exec, 3")
    e("s_cmp_lg_u32 s60, 0")
    gstore("global_store_dwordx4 v19, v[60:63], s[26:27] offset:1024")
    e("s_mov_b64 exec, -1")
    stamp(7)
    if b2d: bar("B2d")
    bar("B3")
    bar("B3b")
    stamp(8)
    e("s_waitcnt vmcnt(1)")
    e("s_cmp_eq_u32 s6, 0"); e("s_cbranch_scc1 L_hchk")
    e("s_branch L_b3c")
    c("---- stage 4 ----")
    e("L_final:")
    stamp(11)
    if not emark: e("s_mov_b64 exec, 1"); e("global_store_byte v8, v10, s[30:31]"); e("s_mov_b64 exec, -1")
    e("s_cmp_ge_u32 s56, 36"); e("s_cbranch_scc1 L_fin")
    c("reading a line before it is written slows its writer down: hold off while neighbours on this XCD are still busy")
    e("L_gp:")
    e("global_load_ubyte v20, v9, s[30:31] sc1"); e("s_waitcnt vmcnt(0)")
    e("v_cmp_eq_u32 vcc, s40, v20")
    e("s_cbranch_vccz L_fpoll"); e("s_sub_u32 s41, s41, 1"); e("s_cbranch_scc0 L_gp")
    def ld(i): e(f"global_load_dwordx4 v[{32+4*i}:{35+4*i}], v{124+i}, s[26:27] sc1")
    def red(b, src):
        e(f"v_pk_add_f32 v[{b}:{b+1}], v[{src}:{src+1}], v[{src+4}:{src+5}]"); e(f"v_pk_add_f32 v[{b+2}:{b+3}], v[{src+2}:{src+3}], v[{src+6}:{src+7}]")
    def red2(bs):
        rscat(bs)
        for sh in (4, 8):
            for b in bs: e(f"v_add_f32_dpp v{b}, v{b}, v{b} row_ror:{sh} {DPP}")
    e("L_fpoll:")
    for i in (2, 3, 0, 1): ld(i)
    e("s_waitcnt vmcnt(2)")
    untag(40, 2, 19); red(28, 40)
    poll_end("L_fpoll", "L_sgot")
    e("s_waitcnt vmcnt(0)")
    untag(32, 2, 19); red(20, 32)
    e("s_cbranch_vccz L_fgot")
    ld(0); ld(1)
    red2([28])
    e("s_branch L_fchk")
    e("L_fp2:")
    ld(0); ld(1)
    e("L_fchk:")
    e("s_waitcnt vmcnt(0)")
    untag(32, 2, 19); red(20, 32)
    poll_end("L_fp2", "L_fg2")
    stamp(12)
    e("s_nop 0")
    red2([20])
    e("s_branch L_fmath")
    e("L_fgot:")
    stamp(12)
    e("s_nop 0")
    red2([20, 28])
    e("L_fmath:")
    c("out = bf16(x + bf16(s * bf16(silu(f))))")
    e("v_cvt_pk_bf16_f32 v20, v28, v20"); e("v_and_b32 v21, s51, v20"); e("v_lshlrev_b32 v20, 16, v20")
    e("v_mul_f32 v22, s52, v21"); e("v_exp_f32 v22, v22"); e("v_add_f32 v22, 1.0, v22"); e("v_rcp_f32 v22, v22"); e("v_mul_f32 v21, v21, v22")
    e("v_cvt_pk_bf16_f32 v21, v21, v21"); e("v_and_b32 v21, s51, v21")
    e("v_mul_f32 v20, v20, v21"); e("v_cvt_pk_bf16_f32 v20, v20, v20"); e("v_and_b32 v20, s51, v20")
    e("v_add_f32 v20, v4, v20"); e("v_cvt_pk_bf16_f32 v20, v20, v20")
    e("s_mov_b32 exec_lo, 0x000f000f"); e("s_mov_b32 exec_hi, 0x000f000f")
    e("global_store_short v3, v20, s[24:25]")
    c("every workgroup has read the old tag word by now (all of them fed these partials): leave this launch's tag in it")
    e(f"s_cmp_lg_u32 s2, {diagwg}"); e("s_cbranch_scc1 L_fin")
    e("s_mov_b64 exec, 1"); e("v_mov_b32 v22, s48")
    e(f"global_store_dword v98, v22, s[26:27] offset:{EPOCH}")
    if diag is not None:
        e("s_memrealtime s[60:61]"); e("s_waitcnt lgkmcnt(0)")
        e(f"s_sub_u32 s62, s{64+2*diag}, s64"); e("s_lshl_b32 s62, s62, 3"); e("s_min_u32 s62, s62, 100000")
        e("L_diag:"); e("s_memrealtime s[50:51]"); e("s_waitcnt lgkmcnt(0)"); e("s_sub_u32 s50, s50, s60"); e("s_cmp_lt_u32 s50, s62"); e("s_cbranch_scc1 L_diag")
    e("L_fin:")
    stamp(13)
    dump()
    e("L_end:")
    e("s_endpgm")
    body = pad(L)
    out = HEADER + f"; @launch grid=(256,1,1) block=(576,1,1) lds={LDS_END}\n;\n" + DOC
    out += '.amdgcn_target "amdgcn-amd-amdhsa--gfx950"\n.text\n' + f".globl {KN}\n"
    if align: out += "; never executed: places the entry at the start of a 4 KiB page, so the stream waves' code sits in one page\n.p2align 12\n.fill 832, 4, 0xbf800000\n"
    out += f".p2align 8\n.type {KN},@function\n"
    out += "\n".join(x if x.endswith(":") else "    " + x for x in body) + "\n"
    out += f""".section .rodata,"a"
.p2align 6
.amdhsa_kernel {KN}
  .amdhsa_next_free_vgpr 136
  .amdhsa_next_free_sgpr {96 if (stamps or diag is not None) else 64}
  .amdhsa_accum_offset 136
  .amdhsa_group_segment_fixed_size 0
  .amdhsa_kernarg_size 88
  .amdhsa_user_sgpr_count 2
  .amdhsa_user_sgpr_kernarg_segment_ptr 1
  .amdhsa_system_sgpr_workgroup_id_x 1
  .amdhsa_float_denorm_mode_32 3
.end_amdhsa_kernel
"""
    return out
if __name__ == "__main__":
    open(sys.argv[1] if len(sys.argv) > 1 else f"cdna_kernels/{NAME}.s", "w").write(gen())
```

```python
import sys, struct
sys.path.insert(0, "gen")
from asmlib import pad
NAME = "recurrent_scan__sliding_block_cached__dense_activation_silu__decode"
KN = NAME + "_kernel"
def f2u(x): return struct.unpack("<I", struct.pack("<f", x))[0]
XN, ACT, QL, MX, PL, XR, S1T = 0, 1600, 3200, 3776, 3904, 4928, 9728
QZ = QL + 544
S4T = S1T + 41472
VL = S4T + 41472
LDS_END = VL + 65536
assert VL % 256 == 0 and LDS_END <= 163840
PITCH = 400
EPOCH, X1, OX, FX = 0, 4096, 593920, 888832
FXP = 16384 + 256
STAMP = 0x8000000
LOG2E = 1.4426950408889634
DPP = "row_mask:0xf bank_mask:0xf"
HEADER = open(f"cdna_kernels/{NAME}.s.ref").read().split("; Override launch")[0]
DOC = f"""; out = x + (attn(ln(x)) @ wo) * silu(silu(ln(x) @ w1) @ w2), one launch, one workgroup (9 waves) per CU.
;
;
"""

def gen(stamps=False, diag=None, diagwg=0xe0, spin=1 << 20, align=True, help=None, hpol='', hwhen=1, b2d=True, olate=False, emark=False, ftouch=0, gd=True, hold=0, hcls=1, hw=2, k0w=0, wK1=3, wV0=2, wV1=2, k0bar=False, xearly=True):
    L = []; e = L.append
    def c(t): e("; " + t)
    nlab = [0]
    def lab(p):
        nlab[0] += 1; return f"L_{p}{nlab[0]}"
    def stamp(i):
        if stamps or (diag is not None and i in (0, diag)): e(f"s_memrealtime s[{64+2*i}:{65+2*i}]")
    def dump():
        if not stamps: return
        e("s_waitcnt lgkmcnt(0)")
        l = lab("dl")
        e(f"{l}:"); e("s_sleep 20"); e("s_memrealtime s[50:51]"); e("s_waitcnt lgkmcnt(0)"); e("s_sub_u32 s50, s50, s64"); e("s_cmp_lt_u32 s50, 1600"); e(f"s_cbranch_scc1 {l}")
        e("s_mov_b64 exec, -1")
        e("s_mul_i32 s50, s2, 9"); e("s_add_u32 s50, s50, s3"); e("s_lshl_b32 s50, s50, 6"); e(f"s_add_u32 s50, s50, {STAMP}")
        e("v_mov_b32 v9, s50"); e("s_min_u32 s94, s60, 1"); e("s_getreg_b32 s51, hwreg(HW_REG_XCC_ID, 0, 4)"); e("s_lshl4_add_u32 s94, s51, s94")
        e("s_getreg_b32 s51, hwreg(HW_REG_HW_ID)"); e("s_lshl_b32 s51, s51, 8"); e("s_or_b32 s94, s94, s51"); e("s_mov_b32 s92, s49")
        for i in range(16):
            e(f"v_mov_b32 v10, s{64+2*i}"); e(f"global_store_dword v9, v10, s[26:27] offset:{4*i}")
    def bar(t): e(f"s_barrier                                ; {t}")
    def mfma(d, a, b, first): e(f"v_mfma_f32_16x16x32_bf16 v[{d}:{d+3}], v[{a}:{a+3}], v[{b}:{b+3}], " + ("0" if first else f"v[{d}:{d+3}]"))
    def tags():
        c("s48 = this launch's tag, s44..s47 = its bytes")
        e("s_add_u32 s48, s48, 0x01010101")
        e("s_and_b32 s44, s48, 0xff"); e("s_bfe_u32 s45, s48, 0x80008"); e("s_bfe_u32 s46, s48, 0x80010"); e("s_lshr_b32 s47, s48, 24")
    def emk():
        if not emark: return
        l = lab("em")
        e("s_cmp_lg_u32 s3, 8"); e(f"s_cbranch_scc1 {l}")
        e("s_mov_b64 exec, 1"); e("global_store_byte v8, v10, s[30:31]"); e("s_mov_b64 exec, -1")
        e(f"{l}:")
    def ftch():
        c("stage 4 lines: with a copy in L2 an early look costs a hit instead of a fill that races the writer")
        e("s_cmp_ge_u32 s56, 36"); e("s_cbranch_scc1 L_noft")
        e(f"s_mul_i32 s50, s56, {FXP}"); e("s_and_b32 s54, s57, 1"); e("s_lshl_b32 s54, s54, 13"); e("s_add_u32 s50, s50, s54")
        e("s_and_b32 s54, s57, 2"); e("s_lshl_b32 s54, s54, 6"); e("s_add_u32 s50, s50, s54"); e(f"s_add_u32 s50, s50, {FX}")
        e("v_and_b32 v24, 31, v1"); e("v_lshl_add_u32 v24, v24, 8, s50"); e("s_mov_b32 exec_hi, 0")
        e("global_load_dword v24, v24, s[26:27] sc1"); e("s_mov_b32 exec_hi, -1")
        e("L_noft:")
    def xcd_load():
        e("s_lshl_b32 s50, s4, 4"); e("s_load_dwordx4 s[60:63], s[30:31], s50")
    def xcd_flag():
        c("s60 = 0 iff all 16 workgroups of this group posted this XCD's id")
        e("s_mul_i32 s40, s40, 0x01010101"); e("s_mov_b32 s41, s40")
        e("s_xor_b64 s[60:61], s[60:61], s[40:41]"); e("s_xor_b64 s[62:63], s[62:63], s[40:41]")
        e("s_or_b64 s[60:61], s[60:61], s[62:63]"); e("s_or_b32 s60, s60, s61")
    def gstore(text):
        a, b = lab("near"), lab("sent")
        e(f"s_cbranch_scc0 {a}"); e(text + " sc1"); e(f"s_branch {b}"); e(f"{a}:"); e(text); e(f"{b}:")
    def publish(vSt, mask, group):
        e(f"s_mov_b32 exec_lo, {mask}"); e(f"s_mov_b32 exec_hi, {mask}")
        if group: e("s_cmp_lg_u32 s60, 0"); e("s_nop 4")
        else: e("s_nop 5")
        for r in range(4): e(f"v_bfi_b32 v{120+r}, v11, s{44+r}, v{120+r}")
        st = f"global_store_dwordx4 v{vSt}, v[120:123], s[26:27]"
        if group: gstore(st)
        else: e(st + " sc1")
        e("s_mov_b64 exec, -1")
    def tile_reads(tbase, p0, p1):
        for p in range(p0, p1): e(f"ds_read_b64_tr_b16 v[{80+2*p}:{81+2*p}], v6 offset:{tbase + p*4608}")
    def act_reads(abase, last):
        for s in range(4): e(f"ds_read_b128 v[{100+4*s}:{103+4*s}], v7 offset:{abase + 64*s}")
        if last: e(f"ds_read_b64 v[116:117], v7 offset:{abase + 256}")
    def stage1():
        tile_reads(S1T, 0, 9); act_reads(XN, True)
        for s in range(5):
            e(f"s_waitcnt lgkmcnt({4 - s})"); mfma(120, 80 + 4*s, 100 + 4*s, s == 0)
        publish(8, "0x000f000f", True)
    def untag(base, n, acc):
        for g in range(n):
            for r in range(4): e(f"v_xor_b32 v{base+4*g+r}, s{44+r}, v{base+4*g+r}")
        regs = list(range(base, base + 4*n))
        e(f"v_or3_b32 v{acc}, v{regs[0]}, v{regs[1]}, v{regs[2]}")
        regs = regs[3:]
        while len(regs) >= 2:
            e(f"v_or3_b32 v{acc}, v{acc}, v{regs[0]}, v{regs[1]}"); regs = regs[2:]
        if regs: e(f"v_or_b32 v{acc}, v{acc}, v{regs[0]}")
        e(f"v_and_b32 v{acc}, v11, v{acc}")
        e(f"v_cmp_ne_u32 vcc, 0, v{acc}")
    def poll_end(top, out):
        e(f"s_cbranch_vccz {out}")
        e("s_sub_u32 s49, s49, 1"); e(f"s_cbranch_scc0 {top}")
        e("s_mov_b32 s49, 0")
        e(f"{out}:")
    def rscat(bs):
        for b in bs: e(f"v_permlane32_swap_b32 v{b}, v{b+2}"); e(f"v_permlane32_swap_b32 v{b+1}, v{b+3}")
        for b in bs: e(f"v_pk_add_f32 v[{b}:{b+1}], v[{b}:{b+1}], v[{b+2}:{b+3}]")
        for b in bs: e(f"v_permlane16_swap_b32 v{b}, v{b+1}")
        for b in bs: e(f"v_add_f32 v{b}, v{b}, v{b+1}")
    def tile_addrs():
        c("v6 tile read address, v7 activation read address, v8 / v15 where stage 1 / stage 3 results go")
        e("v_mov_b32 v11, 0xff")
        e("v_mov_b32 v98, 0"); e("v_mov_b32 v99, 0"); e("v_mov_b32 v118, 0"); e("v_mov_b32 v119, 0")
        e(f"s_mov_b32 s49, {spin}")
        e("v_lshrrev_b32 v6, 2, v1"); e("v_mul_u32_u24 v6, 288, v6"); e("v_lshl_add_u32 v6, v12, 3, v6")
        e("s_lshl_b32 s50, s3, 5"); e("v_add_u32 v6, s50, v6")
        e(f"v_mul_u32_u24 v7, {PITCH}, v12"); e("v_lshl_add_u32 v7, v14, 4, v7")
        e("s_lshl_b32 s50, s6, 5"); e("s_add_u32 s50, s50, s7")
        e("s_mul_i32 s51, s50, 9216"); e("s_lshl_b32 s52, s3, 10"); e("s_add_u32 s51, s51, s52")
        e("s_lshl_b32 s52, s28, 8"); e("s_add_u32 s51, s51, s52"); e(f"s_add_u32 s51, s51, {X1}")
        e("v_lshlrev_b32 v8, 4, v14"); e("v_lshl_add_u32 v15, v12, 6, v8"); e("v_add_u32 v8, s51, v15")
        e("s_mul_i32 s51, s28, 9"); e("s_add_u32 s51, s51, s3"); e(f"s_mul_i32 s51, s51, {FXP}"); e("s_lshl_b32 s50, s50, 8")
        e("s_add_u32 s51, s51, s50"); e(f"s_add_u32 s51, s51, {FX}"); e("v_add_u32 v15, s51, v15")
    def h_addrs():
        c("type 0: v128 this wave's 16 columns of the hidden partials, v129 where their activations go in LDS")
        e("s_mul_i32 s50, s7, 9"); e("s_add_u32 s50, s50, s3"); e("s_lshl_b32 s50, s50, 10"); e(f"s_add_u32 s50, s50, {X1}")
        e("v_lshl_add_u32 v128, v1, 4, s50")
        e("s_lshr_b32 s50, s3, 1"); e("s_lshl_b32 s50, s50, 6"); e("s_and_b32 s54, s3, 1"); e("s_lshl3_add_u32 s50, s54, s50")
        e("v_bfe_u32 v129, v1, 2, 2"); e(f"v_mul_u32_u24 v129, {PITCH}, v129"); e("v_lshl_add_u32 v129, v12, 4, v129")
        e("v_lshl_add_u32 v129, v14, 1, v129"); e("v_add_u32 v129, s50, v129")
    def helper():
        if help is None: return
        heavy = [k for k in range(32) if any(((288*k)//128 + i) % 8 == 3 for i in range(3))]
        tab = 0
        for x in range(8):
            hs = [k & 3 for k in heavy if k >> 2 == x]
            assert len(hs) == 1 + (x & 1)
            for u, k in enumerate(hs): tab |= k << (4*x + 2*u)
        c("type 1 workgroups with a cheap first tile pull 81 lines of w2 into L2 for a type 0 neighbour with a costly one")
        e("s_and_b32 s50, s7, 3"); e("s_cmp_eq_u32 s50, 1"); e("s_cselect_b32 s50, 0, s6"); e("s_cmp_eq_u32 s50, 0"); e("s_cbranch_scc1 L_nohelp")
        e("s_and_b32 s50, s7, 15"); e("s_lshl_b32 s50, s50, 1"); e(f"s_lshr_b32 s50, {hex(tab)}, s50"); e("s_and_b32 s50, s50, 3")
        e("s_and_b32 s54, s2, 7"); e("s_lshl2_add_u32 s50, s54, s50"); e("s_mul_i32 s50, s50, 165888")
        e("s_lshr_b32 s54, s4, 3"); e("s_lshl2_add_u32 s54, s54, s28"); e("s_mul_i32 s54, s54, 10368"); e("s_add_u32 s50, s50, s54")
        if help: e(f"s_add_u32 s50, s50, {help*1152}")
        e("v_lshl_add_u32 v22, v1, 7, s50"); e("v_min_u32 v23, 16, v1"); e("v_lshl_add_u32 v23, v23, 7, s50"); e("v_add_u32 v23, 8192, v23")
        e(f"global_load_dword v22, v22, s[22:23] {hpol}"); e(f"global_load_dword v23, v23, s[22:23] {hpol}")
        e("L_nohelp:")
    def s4load(n):
        e("s_mov_b32 exec_hi, 0x003fffff")
        for t in range(n):
            e("buffer_load_dwordx4 v3, s[36:39], s58 offen nt lds")
            e("s_add_u32 m0, m0, 6912"); e("s_add_u32 s58, s58, 27648")
        e("s_mov_b32 exec_hi, -1")
    def kload(t, r0=0, r1=4):
        for r in range(r0, r1): e(f"global_load_dwordx4 v[{16+16*t+4*r}:{19+16*t+4*r}], v4, s[10:11] offset:{256*r} nt")
    def vload():
        for r in range(4): e(f"global_load_lds_dwordx4 v{4 if r & 1 else 5}, s[12:13] offset:{1024*r} nt")
    def oproc():
        e("v_pk_mul_f32 v[20:21], v[20:21], v[28:29]"); e("v_pk_mul_f32 v[22:23], v[22:23], v[28:29]")
        for sh in (8, 4):
            for r in range(4): e(f"v_add_f32_dpp v{20+r}, v{20+r}, v{20+r} row_ror:{sh} {DPP}")
        e("v_cvt_pk_bf16_f32 v20, v20, v21"); e("v_cvt_pk_bf16_f32 v21, v22, v23")
        e(f"ds_write_b64 v129, v[20:21] offset:{ACT}")
        e("s_waitcnt lgkmcnt(0)")

    e(f"{KN}:")
    stamp(0)
    e("s_load_dwordx16 s[8:23], s[0:1], 0")
    e("s_load_dwordx2 s[24:25], s[0:1], 64     ; out")
    e("s_load_dwordx2 s[26:27], s[0:1], 80     ; ws")
    e("s_load_dwordx2 s[30:31], s[0:1], 72     ; debug")
    e("s_cmp_ge_u32 s2, 256"); e("s_cbranch_scc1 L_end")
    e("v_lshrrev_b32 v2, 6, v0"); e("v_and_b32 v1, 63, v0")
    e("v_readfirstlane_b32 s3, v2")
    e("s_and_b32 s4, s2, 15                    ; hkv")
    e("s_lshr_b32 s5, s2, 4                    ; j")
    e("s_lshr_b32 s6, s2, 7                    ; type")
    e("s_bfe_u32 s29, s2, 0x10006")
    e("s_lshl1_add_u32 s7, s4, s29")
    e("s_and_b32 s28, s5, 3")
    e("s_getreg_b32 s40, hwreg(HW_REG_XCC_ID, 0, 4)"); e("s_bitset1_b32 s40, 7")
    e("v_lshlrev_b32 v13, 4, v1")
    e("s_sub_u32 s3, s3, 1"); e("s_cbranch_scc0 L_stream")
    c("---- service wave, head: pull the code into L2, post the XCD id, fetch x into LDS ----")
    e("s_mov_b32 s3, 8")
    e("s_getpc_b64 s[52:53]"); e("L_pc:")
    e("v_lshlrev_b32 v4, 7, v1"); e("v_min_u32 v4, L_end-L_pc, v4")
    e("global_load_dword v5, v4, s[52:53]")
    e(f"s_mov_b32 m0, {XR}"); e("v_add_u32 v4, 4096, v13")
    e("s_lshl4_add_u32 s53, s4, s5"); e("v_mov_b32 v7, s53"); e("v_mov_b32 v6, s40")
    e("s_and_b32 s53, s53, 0xc0"); e("s_xor_b32 s53, s53, 64"); e("s_mov_b64 exec, 1")
    e("s_waitcnt lgkmcnt(0)")
    e(f"s_load_dword s48, s[26:27], {EPOCH}")
    e("s_load_dword s42, s[30:31], s53")
    e("global_store_byte v7, v6, s[30:31]"); e("s_mov_b64 exec, -1")
    for i in range(4): e(f"global_load_lds_dwordx4 v13, s[8:9] offset:{1024*i}")
    e(f"s_mov_b32 m0, {XR + 4096}"); e("s_mov_b32 exec_hi, 0")
    e("global_load_lds_dwordx4 v4, s[8:9]")
    e("s_mov_b32 exec_hi, -1")
    e("s_branch L_service")

    e("L_stream:")
    c("---- stream waves: first tile -> LDS, 3 rows of 288 bytes pitch per load ----")
    e("s_and_b32 s50, s2, 7"); e("s_lshr_b32 s51, s4, 3"); e("s_lshl1_add_u32 s50, s50, s51"); e("s_lshl1_add_u32 s50, s50, s29")
    e("s_cmp_lg_u32 s6, 0"); e("s_cselect_b32 s43, s7, s50")
    e("s_sub_u32 s51, 9, s6")
    e("s_mul_i32 s59, s51, 18432")
    e("s_lshl_b32 s50, s51, 10")
    e("s_mul_i32 s34, s51, 589824")
    e("s_lshl_b32 s51, s51, 5")
    e("s_mov_b32 s35, 0x20000")
    e("s_mul_i32 s51, s51, s43")
    e("s_mul_i32 s52, s28, 48"); e("s_add_u32 s52, s52, s3"); e("s_mul_i32 s52, s52, s50"); e("s_mul_i32 s52, s52, 3"); e("s_add_u32 s42, s51, s52")
    e("v_mul_u32_u24 v9, 57, v1"); e("v_lshrrev_b32 v9, 10, v9                ; lane / 18")
    e("v_mul_u32_u24 v10, 288, v9"); e("v_sub_u32 v10, v13, v10                 ; (lane % 18) * 16")
    e("v_mad_u32_u24 v2, v9, s50, v10")
    e("s_mul_i32 s56, s50, 24")
    e("s_mul_i32 s57, s3, 864")
    e(f"s_add_u32 m0, s57, {S1T}")
    e("s_cmp_lg_u32 s6, 0")
    e("s_cselect_b32 s55, 0, 0x0030000c"); e("s_or_b32 exec_hi, s55, 0x000ffff3")
    e("s_cmp_lg_u32 s6, 0")
    e("s_cselect_b32 exec_lo, 0xfffcffff, -1")
    e("s_waitcnt lgkmcnt(0)")
    e("s_cselect_b64 s[32:33], s[14:15], s[20:21]")
    e("s_cselect_b64 s[36:37], s[16:17], s[22:23]")
    stamp(1)
    for t in range(6):
        e("buffer_load_dwordx4 v2, s[32:35], s42 offen nt lds")
        if t < 5: e("s_add_u32 m0, m0, 6912"); e("s_add_u32 s42, s42, s56")
    e("s_mov_b64 exec, -1")
    e(f"s_load_dword s48, s[26:27], {EPOCH}")
    c("K / V: two 16-key blocks per wave; the block order is rotated per workgroup to spread the HBM stacks")
    e("s_lshr_b32 s50, s5, 2"); e("s_lshl_b32 s50, s50, 24"); e("s_lshl_b32 s51, s4, 20"); e("s_add_u32 s50, s50, s51")
    e("s_lshl_b32 s51, s28, 16"); e("s_add_u32 s50, s50, s51")
    e("s_xor_b32 s51, s5, s4"); e("s_xor_b32 s51, s51, s3"); e("s_lshl_b32 s51, s51, 12"); e("s_add_u32 s50, s50, s51")
    e("s_add_u32 s50, s50, 786432")
    e("v_and_b32 v12, 3, v1"); e("v_lshrrev_b32 v14, 4, v1")
    e("v_lshlrev_b32 v5, 5, v14"); e("v_xor_b32 v5, v5, v13"); e("v_add_u32 v5, s50, v5")
    e("v_bfe_u32 v13, v1, 2, 2")
    e("v_lshl_add_u32 v4, v13, 10, s50"); e("v_lshl_add_u32 v4, v14, 6, v4"); e("v_lshl_add_u32 v4, v12, 4, v4           ; K source")
    e("s_mul_i32 s51, s59, s43"); e("s_add_u32 s38, s51, s59"); e("s_mov_b32 s39, 0x20000")
    e("s_mul_i32 s52, s28, 288"); e("s_add_u32 s51, s51, s52"); e("s_mul_i32 s52, s3, 3456"); e("s_add_u32 s58, s51, s52")
    e("v_mul_u32_u24 v3, 1152, v9"); e("v_add_u32 v3, v3, v10")
    tile_addrs()
    if hold:
        c("s59 != 0: type 1 workgroups with a cheap first tile hold K loads back until their q partials are out")
        if hcls == 1: e("s_and_b32 s59, s7, 3"); e("s_cmp_eq_u32 s59, 1"); e("s_cselect_b32 s59, 0, s6")
        else: e("s_mov_b32 s59, s6")
    if k0bar: e("s_waitcnt vmcnt(2)")
    else:
        if xearly: e("s_waitcnt vmcnt(2)"); xcd_load()
        e(f"s_waitcnt vmcnt({k0w})")
        kload(0, 0, 4 - hold)
    if k0bar or not xearly: xcd_load()
    if hold:
        e("s_cmp_lg_u32 s59, 0"); e("s_cbranch_scc1 L_k0s")
        kload(0, 4 - hold, 4)
        e("s_branch L_k0d"); e("L_k0s:"); e(f"s_waitcnt vmcnt({4 - hold})"); e("L_k0d:")
    elif not k0bar: e("v_xor_b32 v4, 0x8000, v4")
    e("s_waitcnt lgkmcnt(0)")
    tags(); xcd_flag()
    if k0bar or k0w: e(f"s_waitcnt vmcnt({0 if k0bar else 4})")
    stamp(2)
    bar("B1: xn and the first tile are in LDS")
    if k0bar: kload(0); e("v_xor_b32 v4, 0x8000, v4")
    stamp(3)
    stage1()
    e(f"v_add_u32 v6, {S4T}, v6")
    bar("B1b: stage 1 stores are issued")
    stamp(4)
    if hold:
        e("s_cmp_eq_u32 s59, 0"); e("s_cbranch_scc1 L_k0l")
        kload(0, 4 - hold, 4); e(f"s_waitcnt vmcnt({hw})")
        e("L_k0l:")
        e("v_xor_b32 v4, 0x8000, v4")
    e(f"s_waitcnt vmcnt({wK1})")
    kload(1)
    c("v8 / v9 q fragments for block 0 / 1 (zeros in the other block's columns), v2 P slot, v10 max slot")
    e("v_bfe_u32 v10, v1, 2, 1")
    e("v_mul_u32_u24 v9, 272, v10"); e("v_lshl_add_u32 v9, v14, 6, v9"); e("v_lshl_add_u32 v9, v12, 4, v9")
    e("v_and_b32 v2, 8, v1"); e("v_cmp_eq_u32 vcc, 0, v2"); e(f"v_mov_b32 v4, {QZ - QL}")
    e("v_cndmask_b32 v8, v4, v9, vcc"); e("v_cndmask_b32 v9, v9, v4, vcc")
    e("s_lshr_b32 s50, s3, 1"); e("s_lshl_b32 s50, s50, 7"); e("s_and_b32 s51, s3, 1"); e("s_lshl3_add_u32 s50, s51, s50")
    e("v_lshl_add_u32 v2, v2, 6, s50"); e("v_lshl_add_u32 v2, v14, 5, v2"); e("v_lshl_add_u32 v2, v10, 4, v2")
    e("v_lshlrev_b32 v10, 2, v10")
    c("v124 V read address, v125 P read address, v126 where this wave's 16 columns of O go")
    e("v_lshrrev_b32 v124, 2, v1"); e("v_and_b32 v125, 7, v124"); e("v_xor_b32 v125, s3, v125")
    e("v_lshlrev_b32 v124, 8, v124"); e("v_lshl_add_u32 v124, v125, 5, v124"); e("v_lshl_add_u32 v124, v12, 3, v124"); e(f"v_add_u32 v124, {VL}, v124")
    e("v_and_b32 v126, 1, v1"); e("v_lshlrev_b32 v125, 5, v14"); e("v_lshl_add_u32 v125, v126, 4, v125")
    e("s_lshl4_add_u32 s50, s4, s5"); e("s_mul_i32 s50, s50, 1152"); e("s_lshl_b32 s51, s3, 6"); e("s_add_u32 s50, s50, s51"); e(f"s_add_u32 s50, s50, {OX}")
    e("v_lshl_add_u32 v126, v126, 9, s50"); e("v_lshl_add_u32 v126, v14, 4, v126")
    e("s_lshl_b32 s53, s3, 12"); e(f"s_add_u32 m0, s53, {VL}")
    e("v_xor_b32 v4, 0x80, v5")
    e(f"s_waitcnt vmcnt({wV0})")
    vload()
    e("s_add_u32 m0, m0, 32768")
    e("v_xor_b32 v5, 0x8000, v5"); e("v_xor_b32 v4, 0x8000, v4")
    c("type 1: wave = (batch, half of d), lane = (16 columns, chunk, 4 columns): v128 O, v127 (max, sum), v129 LDS slot")
    e("s_lshr_b32 s50, s3, 1"); e("s_and_b32 s51, s3, 1")
    e("s_lshl2_add_u32 s53, s4, s50"); e("s_mul_i32 s53, s53, 4608"); e(f"s_add_u32 s53, s53, {OX}")
    e("s_lshl4_add_u32 s54, s29, s53"); e("v_lshl_add_u32 v127, v13, 5, s54")
    e("s_cmp_eq_u32 s6, 0"); e("s_cbranch_scc1 L_addrA")
    e("s_lshl1_add_u32 s55, s29, s51"); e("s_lshl_b32 s55, s55, 8"); e("s_add_u32 s53, s53, s55")
    e("v_mul_u32_u24 v128, 1152, v13"); e("v_lshl_add_u32 v128, v14, 6, v128"); e("v_lshl_add_u32 v128, v12, 4, v128"); e("v_add_u32 v128, s53, v128")
    e(f"s_mul_i32 s50, s50, {PITCH}"); e("s_lshl_b32 s51, s51, 7"); e("s_add_u32 s50, s50, s51")
    e("v_lshrrev_b32 v13, 5, v1"); e("v_lshl_add_u32 v129, v13, 6, s50"); e("v_lshl_add_u32 v129, v12, 4, v129")
    e("v_and_b32 v13, 1, v14"); e("v_lshl_add_u32 v129, v13, 3, v129")
    e(f"s_waitcnt vmcnt({wV1})")
    e("s_branch L_v1")
    e("L_addrA:")
    h_addrs()
    e(f"s_waitcnt vmcnt({wV1})")
    e("global_load_dwordx4 v[100:103], v128, s[26:27] sc1")
    e("L_v1:")
    vload()
    e(f"s_add_u32 m0, s57, {S4T}")
    e(f"s_mov_b32 s54, {hex(f2u(128 ** -0.5))}"); e("s_mov_b32 s51, 0xffff0000"); e(f"s_mov_b32 s52, {hex(f2u(LOG2E))}")
    stamp(5)
    bar("B2: q is in LDS")
    stamp(6)
    c("scores: rows (key, quarter of d) x columns (block, head, quarter of d); the diagonal quarters are summed")
    e(f"ds_read_b128 v[48:51], v8 offset:{QL}"); e(f"ds_read_b128 v[52:55], v9 offset:{QL}")
    e("s_waitcnt lgkmcnt(1)")
    for r in range(4): mfma(56 + 4*r, 16 + 4*r, 48, True)
    e("s_waitcnt lgkmcnt(0)")
    for r in range(4): mfma(56 + 4*r, 32 + 4*r, 52, False)
    for q in (1, 2, 3):
        for r in range(4):
            e(f"v_add_f32_dpp v{72+r}, v{56+4*r+q}, v{56+4*r if q == 1 else 72+r} quad_perm:[{q},{q},{q},{q}] {DPP}")
    def rnd():
        for p in range(2): e(f"v_cvt_pk_bf16_f32 v{76+p}, v{72+2*p}, v{73+2*p}")
        for p in range(2):
            e(f"v_lshlrev_b32 v{72+2*p}, 16, v{76+p}"); e(f"v_and_b32 v{73+2*p}, s51, v{76+p}")
    c("bf16(bf16(q.k) * 128^-0.5), as the reference rounds them")
    rnd()
    for p in range(2): e(f"v_pk_mul_f32 v[{72+2*p}:{73+2*p}], v[{72+2*p}:{73+2*p}], s[54:55] op_sel_hi:[1,0]")
    rnd()
    e("v_max3_f32 v76, v72, v73, v74"); e("v_max_f32 v76, v76, v75")
    e("s_mov_b32 exec_lo, 0x11111111"); e("s_mov_b32 exec_hi, 0x11111111")
    e(f"ds_max_f32 v10, v76 offset:{MX}")
    e("s_waitcnt lgkmcnt(0)")
    bar("B2b: the chunk's maxima are in LDS")
    e(f"ds_read_b32 v56, v10 offset:{MX}")
    e("s_waitcnt lgkmcnt(0)")
    for p in range(2): e(f"v_pk_add_f32 v[{72+2*p}:{73+2*p}], v[{72+2*p}:{73+2*p}], v[56:57] op_sel_hi:[1,0] neg_lo:[0,1] neg_hi:[0,1]")
    for p in range(2): e(f"v_pk_mul_f32 v[{72+2*p}:{73+2*p}], v[{72+2*p}:{73+2*p}], s[52:53] op_sel_hi:[1,0]")
    for i in range(4): e(f"v_exp_f32 v{72+i}, v{72+i}")
    e("v_cvt_pk_bf16_f32 v76, v72, v73"); e("v_cvt_pk_bf16_f32 v77, v74, v75")
    e(f"ds_write_b64 v2, v[76:77] offset:{PL}")
    e("s_mov_b64 exec, -1")
    e("s_cmp_eq_u32 s6, 0")
    e("s_waitcnt vmcnt(5) lgkmcnt(0)")
    e("s_cbranch_scc1 L_b2c"); e("s_waitcnt vmcnt(4)"); e("L_b2c:")
    bar("B2c: P and the first half of V are in LDS")
    stamp(7)
    c("O[16 columns of this wave] over all 256 keys of the chunk")
    for a in range(4):
        e(f"ds_read_b128 v[{16+4*a}:{19+4*a}], v125 offset:{PL + 128*a}")
        for x in range(2): e(f"ds_read_b64_tr_b16 v[{48+4*a+2*x}:{49+4*a+2*x}], v124 offset:{(2*a+x)*4096}")
    for a in range(4):
        e(f"s_waitcnt lgkmcnt({9-3*a})"); mfma(120, 48 + 4*a, 16 + 4*a, a == 0)
    for a in range(4): e(f"ds_read_b128 v[{32+4*a}:{35+4*a}], v125 offset:{PL + 512 + 128*a}")
    if b2d: bar("B2d: the (max, sum) store is ahead of the tile loads")
    s4load(3)
    e("s_waitcnt vmcnt(3) lgkmcnt(0)")
    stamp(8)
    bar("B3: the second half of V is in LDS")
    for a in range(4):
        for x in range(2): e(f"ds_read_b64_tr_b16 v[{64+4*a+2*x}:{65+4*a+2*x}], v124 offset:{32768 + (2*a+x)*4096}")
    for a in range(4):
        e(f"s_waitcnt lgkmcnt({6-2*a})"); mfma(120, 64 + 4*a, 32 + 4*a, False)
    publish(126, "0x00030003", True)
    stamp(9)
    bar("B3b: every O store is ahead of the remaining tile loads")
    e("s_cmp_eq_u32 s6, 0"); e("s_cbranch_scc1 L_tailA")
    c("---- type 1: merge the four chunks of every batch, then wo ----")
    e("global_load_dwordx4 v[24:27], v127, s[26:27] offset:1024 sc1")
    s4load(3)
    e("s_waitcnt vmcnt(3)")
    stamp(1)
    if not olate: e("global_load_dwordx4 v[20:23], v128, s[26:27] sc1")
    e("L_b3c:")
    bar("B3c: tile rows 0..71 are in LDS")
    tile_reads(0, 0, 4)
    e("s_cmp_eq_u32 s3, 8"); e("s_cbranch_scc1 L_b4")
    e("s_branch L_mchk")
    e("L_mpoll:")
    e("global_load_dwordx4 v[24:27], v127, s[26:27] offset:1024 sc1")
    e("s_waitcnt vmcnt(0)")
    e("L_mchk:")
    untag(24, 1, 28)
    poll_end("L_mpoll", "L_mgot")
    c("v28 = v29 = exp(m_c - M) / sum_c exp(m_c - M) l_c")
    e(f"v_max_f32_dpp v28, v24, v24 row_ror:4 {DPP}"); e(f"v_max_f32_dpp v28, v28, v28 row_ror:8 {DPP}")
    e("v_sub_f32 v28, v24, v28"); e("v_mul_f32 v28, s52, v28"); e("v_exp_f32 v28, v28")
    e("v_mul_f32 v25, v25, v28")
    e(f"v_add_f32_dpp v25, v25, v25 row_ror:8 {DPP}"); e(f"v_add_f32_dpp v25, v25, v25 row_ror:4 {DPP}")
    e("v_rcp_f32 v25, v25")
    e("v_mul_f32 v28, v28, v25"); e("v_mov_b32 v29, v28")
    if olate: e("global_load_dwordx4 v[20:23], v128, s[26:27] sc1")
    if stamps: e("s_waitcnt vmcnt(1)"); stamp(10)
    e("s_branch L_ochk")
    e("L_opoll:")
    e("global_load_dwordx4 v[20:23], v128, s[26:27] sc1")
    e("L_ochk:")
    e("s_waitcnt vmcnt(0)")
    untag(20, 1, 30)
    poll_end("L_opoll", "L_ogot")
    oproc()
    stamp(11)
    e("L_b4:")
    bar("B4: o and the whole second tile are in LDS")
    emk()
    stamp(12)
    e(f"ds_read_b128 v[100:103], v7 offset:{ACT}"); e(f"ds_read_b128 v[104:107], v7 offset:{ACT + 64}")
    for s in (2, 3):
        e(f"ds_read_b128 v[{100+4*s}:{103+4*s}], v7 offset:{ACT + 64*s}"); tile_reads(0, 2*s, 2*s + 2)
    for s, w in enumerate((7, 6, 3, 0)):
        e(f"s_waitcnt lgkmcnt({w})"); mfma(120, 80 + 4*s, 100 + 4*s, s == 0)
    e("L_pub:")
    publish(15, "0x000f000f", False)
    e("s_cmp_eq_u32 s3, 8"); e("s_cbranch_scc1 L_final")
    stamp(13)
    dump()
    e("s_endpgm")
    c("---- type 0: silu of the summed hidden partials, then w2 ----")
    e("L_tailA:")
    s4load(3)
    e("s_branch L_hchk")
    e("L_hpoll:")
    e("global_load_dwordx4 v[100:103], v128, s[26:27] sc1")
    e("s_waitcnt vmcnt(0)")
    e("L_hchk:")
    untag(100, 1, 104)
    poll_end("L_hpoll", "L_hgot")
    rscat([100])
    e("v_cvt_pk_bf16_f32 v100, v100, v100"); e("v_and_b32 v100, 0xffff0000, v100")
    e(f"v_mul_f32 v101, {hex(f2u(-LOG2E))}, v100"); e("v_exp_f32 v101, v101"); e("v_add_f32 v101, 1.0, v101"); e("v_rcp_f32 v101, v101")
    e("v_mul_f32 v100, v100, v101"); e("v_cvt_pk_bf16_f32 v100, v100, v100")
    e(f"ds_write_b16 v129, v100 offset:{ACT}")
    e("s_waitcnt vmcnt(3) lgkmcnt(0)")
    stamp(1)
    bar("B3c: the activations and tile rows 0..71 are in LDS")
    act_reads(ACT, True)
    tile_reads(0, 0, 4)
    e("s_waitcnt lgkmcnt(0)")
    for s in range(2): mfma(120, 80 + 4*s, 100 + 4*s, s == 0)
    e("s_waitcnt vmcnt(0)")
    stamp(10)
    bar("B4a: the second tile is in LDS")
    emk()
    stamp(12)
    tile_reads(0, 4, 9)
    for s in range(2, 5):
        e(f"s_waitcnt lgkmcnt({max(7 - 2*s, 0)})"); mfma(120, 80 + 4*s, 100 + 4*s, False)
    e("s_branch L_pub")

    c("---- service wave ----")
    e("L_service:")
    e("v_lshrrev_b32 v14, 4, v1"); e("v_and_b32 v12, 3, v1"); e("v_and_b32 v13, 15, v1")
    e("v_mul_u32_u24 v2, 1152, v14"); e("v_lshl_add_u32 v2, v13, 3, v2")
    e("s_mul_i32 s50, s28, 288"); e("v_add_u32 v16, s50, v2")
    c("stage 4 role: s56 tile of 16 output columns (< 36), s57 batch; v3 byte offset of this lane's output")
    e("s_xor_b32 s50, s2, 0xe0")
    e("s_and_b32 s56, s50, 7"); e("s_lshr_b32 s51, s50, 5"); e("s_lshl3_add_u32 s56, s51, s56"); e("s_bfe_u32 s57, s50, 0x20003")
    e("s_mul_i32 s51, s57, 1152"); e("s_lshl_b32 s52, s56, 5"); e("s_add_u32 s51, s51, s52")
    e("v_lshl_add_u32 v3, v12, 3, s51"); e("v_lshl_add_u32 v3, v14, 1, v3")
    tile_addrs()
    e(f"ds_write_b64 v98, v[98:99] offset:{QZ}"); e(f"ds_write_b64 v98, v[98:99] offset:{QZ+8}")
    e("v_mov_b32 v20, 0xff800000"); e("v_mov_b32 v21, v20"); e(f"ds_write_b64 v98, v[20:21] offset:{MX}")
    e("s_mov_b32 s51, 0xffff0000")
    e(f"v_mul_u32_u24 v9, {PITCH}, v14"); e("v_bfe_u32 v10, v1, 3, 1"); e("v_lshl_add_u32 v9, v10, 6, v9"); e("v_lshl_add_u32 v9, v12, 4, v9")
    e("v_bfe_u32 v10, v1, 2, 1"); e("v_lshl_add_u32 v9, v10, 3, v9")
    stamp(1)
    e("s_waitcnt vmcnt(0)")
    stamp(2)
    c("layernorm: 16 lanes per batch row, two passes, rounded to bf16 where the reference rounds")
    for i in range(3): e(f"ds_read_b64 v[{34+2*i}:{35+2*i}], v16 offset:{XR + 128*i}")
    for i in range(9): e(f"ds_read_b64 v[{16+2*i}:{17+2*i}], v2 offset:{XR + 128*i}")
    e(f"ds_read_u16 v4, v3 offset:{XR}")
    e("s_waitcnt lgkmcnt(0)")
    for k in range(18):
        e(f"v_lshlrev_b32 v{40+2*k}, 16, v{16+k}"); e(f"v_and_b32 v{41+2*k}, s51, v{16+k}")
    e("v_pk_add_f32 v[76:77], v[40:41], v[42:43]"); e("v_pk_add_f32 v[78:79], v[44:45], v[46:47]")
    for k in range(4, 18): e(f"v_pk_add_f32 v[{76+2*(k&1)}:{77+2*(k&1)}], v[{76+2*(k&1)}:{77+2*(k&1)}], v[{40+2*k}:{41+2*k}]")
    def rowsum():
        e("v_pk_add_f32 v[76:77], v[76:77], v[78:79]"); e("v_add_f32 v76, v76, v77")
        for sh in (8, 4, 2, 1): e(f"v_add_f32_dpp v76, v76, v76 row_ror:{sh} {DPP}")
    rowsum()
    e(f"v_mul_f32 v16, {hex(f2u(-1.0/576))}, v76"); e("v_mov_b32 v17, v16")
    for k in range(18): e(f"v_pk_add_f32 v[{40+2*k}:{41+2*k}], v[{40+2*k}:{41+2*k}], v[16:17]")
    e("v_pk_mul_f32 v[76:77], v[40:41], v[40:41]"); e("v_pk_mul_f32 v[78:79], v[42:43], v[42:43]")
    for k in range(2, 18): e(f"v_pk_fma_f32 v[{76+2*(k&1)}:{77+2*(k&1)}], v[{40+2*k}:{41+2*k}], v[{40+2*k}:{41+2*k}], v[{76+2*(k&1)}:{77+2*(k&1)}]")
    rowsum()
    e(f"v_mul_f32 v18, {hex(f2u(1.0/576))}, v76")
    e("v_cvt_pk_bf16_f32 v18, v16, v18"); e("v_lshlrev_b32 v16, 16, v18"); e("v_and_b32 v18, s51, v18")
    e(f"v_add_f32 v18, {hex(f2u(1e-5))}, v18"); e("v_cvt_pk_bf16_f32 v18, v18, v18"); e("v_and_b32 v18, s51, v18")
    e("v_sqrt_f32 v18, v18"); e("v_mov_b32 v17, v16"); e("v_cvt_pk_bf16_f32 v18, v18, v18"); e("v_and_b32 v18, s51, v18")
    e("v_rcp_f32 v18, v18")
    e("v_mov_b32 v19, v18")
    for k in range(6):
        e(f"v_lshlrev_b32 v{40+2*k}, 16, v{34+k}"); e(f"v_and_b32 v{41+2*k}, s51, v{34+k}")
    for k in range(6): e(f"v_pk_add_f32 v[{40+2*k}:{41+2*k}], v[{40+2*k}:{41+2*k}], v[16:17]")
    for k in range(6): e(f"v_cvt_pk_bf16_f32 v{34+k}, v{40+2*k}, v{41+2*k}")
    for k in range(6):
        e(f"v_lshlrev_b32 v{40+2*k}, 16, v{34+k}"); e(f"v_and_b32 v{41+2*k}, s51, v{34+k}")
    for k in range(6): e(f"v_pk_mul_f32 v[{40+2*k}:{41+2*k}], v[{40+2*k}:{41+2*k}], v[18:19]")
    for k in range(6): e(f"v_cvt_pk_bf16_f32 v{34+k}, v{40+2*k}, v{41+2*k}")
    for i in range(3): e(f"ds_write_b64 v9, v[{34+2*i}:{35+2*i}] offset:{XN + 128*i}")
    c("v16..v19 the q partials of this batch, v9 where q goes in LDS")
    e("s_mul_i32 s50, s4, 18432"); e("s_lshr_b32 s52, s5, 2"); e("s_lshl_b32 s52, s52, 6"); e("s_add_u32 s50, s50, s52"); e(f"s_add_u32 s50, s50, {X1 + 32*9216}")
    e("v_bfe_u32 v10, v1, 2, 2")
    e("v_lshl_add_u32 v16, v10, 10, s50"); e("v_lshl_add_u32 v16, v14, 8, v16"); e("v_lshl_add_u32 v16, v12, 4, v16")
    e("v_add_u32 v17, 4096, v16"); e("v_add_u32 v18, 9216, v16"); e("v_add_u32 v19, 13312, v16")
    e("v_lshlrev_b32 v9, 3, v13"); e("v_lshl_add_u32 v9, v14, 1, v9")
    c("v5: lines that later hand-offs write (own and type 0 partner's O record, the partner's hidden partials); type 1")
    c("loads them once so that the later stores and gathers find them in L2")
    e("s_lshl4_add_u32 s50, s4, s5"); e("s_mul_i32 s53, s50, 1152"); e(f"s_add_u32 s53, s53, {OX}")
    e(f"s_sub_u32 s50, s53, {8*1152 + 9*128}"); e("v_mov_b32 v20, s50"); e("v_mov_b32 v21, s53")
    e("v_cmp_gt_u32 vcc, 9, v1"); e("v_cndmask_b32 v5, v20, v21, vcc"); e("v_lshl_add_u32 v5, v1, 7, v5")
    e("s_mul_i32 s50, s7, 9216"); e("s_lshl_b32 s52, s28, 8"); e("s_add_u32 s50, s50, s52"); e(f"s_add_u32 s50, s50, {X1 - 9*1024}")
    e("v_min_u32 v20, 35, v1"); e("v_lshrrev_b32 v21, 1, v20"); e("v_lshl_add_u32 v21, v21, 10, s50"); e("v_and_b32 v20, 1, v20"); e("v_lshl_add_u32 v21, v20, 7, v21")
    e("v_cmp_gt_u32 vcc, 18, v1"); e("v_cndmask_b32 v5, v21, v5, vcc")
    e("v_mul_lo_u32 v5, v5, s6")
    e("s_waitcnt lgkmcnt(0)")
    xcd_load()
    tags()
    e("s_waitcnt lgkmcnt(0)")
    xcd_flag()
    stamp(3)
    bar("B1")
    e("s_cmp_lg_u32 s6, 0"); e("s_cbranch_scc1 L_nos1")
    stage1()
    e("L_nos1:")
    bar("B1b")
    c("returns after this CU's stage 1 stores went out, so the q gather does not run into them")
    if hwhen == 2: helper()
    if ftouch == 2: ftch()
    e("global_load_dword v5, v5, s[26:27] sc1")
    e("s_waitcnt vmcnt(0)")
    stamp(4)
    e("L_qpoll:")
    for i in range(4): e(f"global_load_dwordx4 v[{60+4*i}:{63+4*i}], v{16+i}, s[26:27] sc1")
    e("s_waitcnt vmcnt(0)")
    untag(60, 4, 76)
    poll_end("L_qpoll", "L_qgot")
    stamp(5)
    rscat([60, 64, 68, 72])
    for i in range(4): e(f"v_cvt_pk_bf16_f32 v{60+4*i}, v{60+4*i}, v{60+4*i}")
    for i in range(4): e(f"ds_write_b16 v9, v{60+4*i} offset:{QL + (i>>1)*272 + (i&1)*128}")
    if ftouch == 1: ftch()
    h_addrs()
    e("s_cmp_lg_u32 s6, 0"); e("s_cbranch_scc1 L_noh")
    e("global_load_dwordx4 v[100:103], v128, s[26:27] sc1")
    e("L_noh:")
    if hwhen == 0: helper()
    e("s_waitcnt lgkmcnt(0)")
    stamp(6)
    bar("B2")
    e(f"s_mov_b32 s52, {hex(f2u(-LOG2E))}")
    e("v_and_b32 v17, 1, v1")
    e("s_mul_i32 s50, s28, 1120"); e("s_sub_u32 s53, s53, s50"); e("v_lshl_add_u32 v19, v17, 4, s53")
    e("v_lshlrev_b32 v16, 5, v14"); e("v_lshl_add_u32 v16, v17, 4, v16")
    e("v_lshlrev_b32 v17, 2, v17")
    for r in range(4): e(f"v_mov_b32 v{56+r}, 0x3f803f80")
    e(f"v_add_u32 v6, {S4T}, v6")
    c("v124..v127 the 64 partials of this workgroup's outputs; v8 / v9 its byte and its group's bytes in d_debug")
    e("s_lshl4_add_u32 s50, s4, s5"); e("v_mov_b32 v8, s50"); e("s_andn2_b32 s50, s50, 15"); e("v_or_b32 v9, s50, v13"); e("v_mov_b32 v10, 0x40")
    e(f"s_mul_i32 s50, s56, {FXP}"); e("s_lshl_b32 s53, s57, 6"); e("s_add_u32 s50, s50, s53"); e(f"s_add_u32 s50, s50, {FX}")
    e("v_lshrrev_b32 v124, 2, v1"); e("v_lshl_add_u32 v124, v124, 8, s50"); e("v_lshl_add_u32 v124, v12, 4, v124")
    e("v_add_u32 v125, 4096, v124"); e("v_add_u32 v126, 8192, v124"); e("v_add_u32 v127, 12288, v124")
    e("v_lshlrev_b32 v4, 16, v4")
    e("s_and_b32 s40, s40, 0xff"); e(f"s_movk_i32 s41, {4096 if gd else 0}")
    if hwhen == 1: helper()
    bar("B2b")
    bar("B2c")
    c("row sums of P (ones @ P) and the maxima -> the (max, sum) line of the O record")
    e(f"ds_read_b32 v60, v17 offset:{MX}")
    for k in range(8): e(f"ds_read_b128 v[{64+4*k}:{67+4*k}], v16 offset:{PL + 128*k}")
    for k in range(8):
        e(f"s_waitcnt lgkmcnt({7-k})"); mfma(120, 56, 64 + 4*k, k == 0)
    e("v_bfi_b32 v62, v11, s46, v60"); e("v_bfi_b32 v60, v11, s44, v60")
    e("v_bfi_b32 v61, v11, s45, v120"); e("v_bfi_b32 v63, v11, s47, v120")
    e("s_mov_b64 exec, 3")
    e("s_cmp_lg_u32 s60, 0")
    gstore("global_store_dwordx4 v19, v[60:63], s[26:27] offset:1024")
    e("s_mov_b64 exec, -1")
    stamp(7)
    if b2d: bar("B2d")
    bar("B3")
    bar("B3b")
    stamp(8)
    e("s_waitcnt vmcnt(1)")
    e("s_cmp_eq_u32 s6, 0"); e("s_cbranch_scc1 L_hchk")
    e("s_branch L_b3c")
    c("---- stage 4 ----")
    e("L_final:")
    stamp(11)
    if not emark: e("s_mov_b64 exec, 1"); e("global_store_byte v8, v10, s[30:31]"); e("s_mov_b64 exec, -1")
    e("s_cmp_ge_u32 s56, 36"); e("s_cbranch_scc1 L_fin")
    c("reading a line before it is written slows its writer down: hold off while neighbours on this XCD are still busy")
    e("L_gp:")
    e("global_load_ubyte v20, v9, s[30:31] sc1"); e("s_waitcnt vmcnt(0)")
    e("v_cmp_eq_u32 vcc, s40, v20")
    e("s_cbranch_vccz L_fpoll"); e("s_sub_u32 s41, s41, 1"); e("s_cbranch_scc0 L_gp")
    def ld(i): e(f"global_load_dwordx4 v[{32+4*i}:{35+4*i}], v{124+i}, s[26:27] sc1")
    def red(b, src):
        e(f"v_pk_add_f32 v[{b}:{b+1}], v[{src}:{src+1}], v[{src+4}:{src+5}]"); e(f"v_pk_add_f32 v[{b+2}:{b+3}], v[{src+2}:{src+3}], v[{src+6}:{src+7}]")
    def red2(bs):
        rscat(bs)
        for sh in (4, 8):
            for b in bs: e(f"v_add_f32_dpp v{b}, v{b}, v{b} row_ror:{sh} {DPP}")
    e("L_fpoll:")
    for i in (2, 3, 0, 1): ld(i)
    e("s_waitcnt vmcnt(2)")
    untag(40, 2, 19); red(28, 40)
    poll_end("L_fpoll", "L_sgot")
    e("s_waitcnt vmcnt(0)")
    untag(32, 2, 19); red(20, 32)
    e("s_cbranch_vccz L_fgot")
    ld(0); ld(1)
    red2([28])
    e("s_branch L_fchk")
    e("L_fp2:")
    ld(0); ld(1)
    e("L_fchk:")
    e("s_waitcnt vmcnt(0)")
    untag(32, 2, 19); red(20, 32)
    poll_end("L_fp2", "L_fg2")
    stamp(12)
    e("s_nop 0")
    red2([20])
    e("s_branch L_fmath")
    e("L_fgot:")
    stamp(12)
    e("s_nop 0")
    red2([20, 28])
    e("L_fmath:")
    c("out = bf16(x + bf16(s * bf16(silu(f))))")
    e("v_cvt_pk_bf16_f32 v20, v28, v20"); e("v_and_b32 v21, s51, v20"); e("v_lshlrev_b32 v20, 16, v20")
    e("v_mul_f32 v22, s52, v21"); e("v_exp_f32 v22, v22"); e("v_add_f32 v22, 1.0, v22"); e("v_rcp_f32 v22, v22"); e("v_mul_f32 v21, v21, v22")
    e("v_cvt_pk_bf16_f32 v21, v21, v21"); e("v_and_b32 v21, s51, v21")
    e("v_mul_f32 v20, v20, v21"); e("v_cvt_pk_bf16_f32 v20, v20, v20"); e("v_and_b32 v20, s51, v20")
    e("v_add_f32 v20, v4, v20"); e("v_cvt_pk_bf16_f32 v20, v20, v20")
    e("s_mov_b32 exec_lo, 0x000f000f"); e("s_mov_b32 exec_hi, 0x000f000f")
    e("global_store_short v3, v20, s[24:25]")
    c("every workgroup has read the old tag word by now (all of them fed these partials): leave this launch's tag in it")
    e(f"s_cmp_lg_u32 s2, {diagwg}"); e("s_cbranch_scc1 L_fin")
    e("s_mov_b64 exec, 1"); e("v_mov_b32 v22, s48")
    e(f"global_store_dword v98, v22, s[26:27] offset:{EPOCH}")
    if diag is not None:
        e("s_memrealtime s[60:61]"); e("s_waitcnt lgkmcnt(0)")
        e(f"s_sub_u32 s62, s{64+2*diag}, s64"); e("s_lshl_b32 s62, s62, 3"); e("s_min_u32 s62, s62, 100000")
        e("L_diag:"); e("s_memrealtime s[50:51]"); e("s_waitcnt lgkmcnt(0)"); e("s_sub_u32 s50, s50, s60"); e("s_cmp_lt_u32 s50, s62"); e("s_cbranch_scc1 L_diag")
    e("L_fin:")
    stamp(13)
    dump()
    e("L_end:")
    e("s_endpgm")
    body = pad(L)
    out = HEADER + f"; @launch grid=(256,1,1) block=(576,1,1) lds={LDS_END}\n;\n" + DOC
    out += '.amdgcn_target "amdgcn-amd-amdhsa--gfx950"\n.text\n' + f".globl {KN}\n"
    if align: out += "; never executed: places the entry at the start of a 4 KiB page, so the stream waves' code sits in one page\n.p2align 12\n.fill 832, 4, 0xbf800000\n"
    out += f".p2align 8\n.type {KN},@function\n"
    out += "\n".join(x if x.endswith(":") else "    " + x for x in body) + "\n"
    out += f""".section .rodata,"a"
.p2align 6
.amdhsa_kernel {KN}
  .amdhsa_next_free_vgpr 136
  .amdhsa_next_free_sgpr {96 if (stamps or diag is not None) else 64}
  .amdhsa_accum_offset 136
  .amdhsa_group_segment_fixed_size 0
  .amdhsa_kernarg_size 88
  .amdhsa_user_sgpr_count 2
  .amdhsa_user_sgpr_kernarg_segment_ptr 1
  .amdhsa_system_sgpr_workgroup_id_x 1
  .amdhsa_float_denorm_mode_32 3
.end_amdhsa_kernel
"""
    return out
if __name__ == "__main__":
    open(sys.argv[1] if len(sys.argv) > 1 else f"cdna_kernels/{NAME}.s", "w").write(gen())
```

```python
import sys, struct
sys.path.insert(0, "gen")
from asmlib import pad
NAME = "recurrent_scan__sliding_block_cached__dense_activation_silu__decode"
KN = NAME + "_kernel"
def f2u(x): return struct.unpack("<I", struct.pack("<f", x))[0]
XN, ACT, QL, MX, PL, XR, S1T = 0, 1600, 3200, 3776, 3904, 4928, 9728
QZ = QL + 544
S4T = S1T + 41472
VL = S4T + 41472
LDS_END = VL + 65536
assert VL % 256 == 0 and LDS_END <= 163840
PITCH = 400
EPOCH, X1, OX, FX = 0, 4096, 593920, 888832
FXP = 16384 + 256
STAMP = 0x8000000
LOG2E = 1.4426950408889634
DPP = "row_mask:0xf bank_mask:0xf"
HEADER = open(f"cdna_kernels/{NAME}.s.ref").read().split("; Override launch")[0]
DOC = f"""; out = x + (attn(ln(x)) @ wo) * silu(silu(ln(x) @ w1) @ w2), one launch, one workgroup (9 waves) per CU.
;
;
"""

def gen(stamps=False, diag=None, diagwg=0xe0, spin=1 << 20, align=True, help=None, hpol='', hwhen=1, b2d=True, olate=False, emark=False, ftouch=0, gd=True, hold=0, hcls=1, hw=2, k0w=0, wK1=3, wV0=2, wV1=2, k0bar=False, xearly=True, mlpre=True):
    L = []; e = L.append
    def c(t): e("; " + t)
    nlab = [0]
    def lab(p):
        nlab[0] += 1; return f"L_{p}{nlab[0]}"
    def stamp(i):
        if stamps or (diag is not None and i in (0, diag)): e(f"s_memrealtime s[{64+2*i}:{65+2*i}]")
    def dump():
        if not stamps: return
        e("s_waitcnt lgkmcnt(0)")
        l = lab("dl")
        e(f"{l}:"); e("s_sleep 20"); e("s_memrealtime s[50:51]"); e("s_waitcnt lgkmcnt(0)"); e("s_sub_u32 s50, s50, s64"); e("s_cmp_lt_u32 s50, 1600"); e(f"s_cbranch_scc1 {l}")
        e("s_mov_b64 exec, -1")
        e("s_mul_i32 s50, s2, 9"); e("s_add_u32 s50, s50, s3"); e("s_lshl_b32 s50, s50, 6"); e(f"s_add_u32 s50, s50, {STAMP}")
        e("v_mov_b32 v9, s50"); e("s_min_u32 s94, s60, 1"); e("s_getreg_b32 s51, hwreg(HW_REG_XCC_ID, 0, 4)"); e("s_lshl4_add_u32 s94, s51, s94")
        e("s_getreg_b32 s51, hwreg(HW_REG_HW_ID)"); e("s_lshl_b32 s51, s51, 8"); e("s_or_b32 s94, s94, s51"); e("s_mov_b32 s92, s49")
        for i in range(16):
            e(f"v_mov_b32 v10, s{64+2*i}"); e(f"global_store_dword v9, v10, s[26:27] offset:{4*i}")
    def bar(t): e(f"s_barrier                                ; {t}")
    def mfma(d, a, b, first): e(f"v_mfma_f32_16x16x32_bf16 v[{d}:{d+3}], v[{a}:{a+3}], v[{b}:{b+3}], " + ("0" if first else f"v[{d}:{d+3}]"))
    def tags():
        c("s48 = this launch's tag, s44..s47 = its bytes")
        e("s_add_u32 s48, s48, 0x01010101")
        e("s_and_b32 s44, s48, 0xff"); e("s_bfe_u32 s45, s48, 0x80008"); e("s_bfe_u32 s46, s48, 0x80010"); e("s_lshr_b32 s47, s48, 24")
    def emk():
        if not emark: return
        l = lab("em")
        e("s_cmp_lg_u32 s3, 8"); e(f"s_cbranch_scc1 {l}")
        e("s_mov_b64 exec, 1"); e("global_store_byte v8, v10, s[30:31]"); e("s_mov_b64 exec, -1")
        e(f"{l}:")
    def ftch():
        c("stage 4 lines: with a copy in L2 an early look costs a hit instead of a fill that races the writer")
        e("s_cmp_ge_u32 s56, 36"); e("s_cbranch_scc1 L_noft")
        e(f"s_mul_i32 s50, s56, {FXP}"); e("s_and_b32 s54, s57, 1"); e("s_lshl_b32 s54, s54, 13"); e("s_add_u32 s50, s50, s54")
        e("s_and_b32 s54, s57, 2"); e("s_lshl_b32 s54, s54, 6"); e("s_add_u32 s50, s50, s54"); e(f"s_add_u32 s50, s50, {FX}")
        e("v_and_b32 v24, 31, v1"); e("v_lshl_add_u32 v24, v24, 8, s50"); e("s_mov_b32 exec_hi, 0")
        e("global_load_dword v24, v24, s[26:27] sc1"); e("s_mov_b32 exec_hi, -1")
        e("L_noft:")
    def xcd_load():
        e("s_lshl_b32 s50, s4, 4"); e("s_load_dwordx4 s[60:63], s[30:31], s50")
    def xcd_flag():
        c("s60 = 0 iff all 16 workgroups of this group posted this XCD's id")
        e("s_mul_i32 s40, s40, 0x01010101"); e("s_mov_b32 s41, s40")
        e("s_xor_b64 s[60:61], s[60:61], s[40:41]"); e("s_xor_b64 s[62:63], s[62:63], s[40:41]")
        e("s_or_b64 s[60:61], s[60:61], s[62:63]"); e("s_or_b32 s60, s60, s61")
    def gstore(text):
        a, b = lab("near"), lab("sent")
        e(f"s_cbranch_scc0 {a}"); e(text + " sc1"); e(f"s_branch {b}"); e(f"{a}:"); e(text); e(f"{b}:")
    def publish(vSt, mask, group):
        e(f"s_mov_b32 exec_lo, {mask}"); e(f"s_mov_b32 exec_hi, {mask}")
        if group: e("s_cmp_lg_u32 s60, 0"); e("s_nop 4")
        else: e("s_nop 5")
        for r in range(4): e(f"v_bfi_b32 v{120+r}, v11, s{44+r}, v{120+r}")
        st = f"global_store_dwordx4 v{vSt}, v[120:123], s[26:27]"
        if group: gstore(st)
        else: e(st + " sc1")
        e("s_mov_b64 exec, -1")
    def tile_reads(tbase, p0, p1):
        for p in range(p0, p1): e(f"ds_read_b64_tr_b16 v[{80+2*p}:{81+2*p}], v6 offset:{tbase + p*4608}")
    def act_reads(abase, last):
        for s in range(4): e(f"ds_read_b128 v[{100+4*s}:{103+4*s}], v7 offset:{abase + 64*s}")
        if last: e(f"ds_read_b64 v[116:117], v7 offset:{abase + 256}")
    def stage1():
        tile_reads(S1T, 0, 9); act_reads(XN, True)
        for s in range(5):
            e(f"s_waitcnt lgkmcnt({4 - s})"); mfma(120, 80 + 4*s, 100 + 4*s, s == 0)
        publish(8, "0x000f000f", True)
    def untag(base, n, acc):
        for g in range(n):
            for r in range(4): e(f"v_xor_b32 v{base+4*g+r}, s{44+r}, v{base+4*g+r}")
        regs = list(range(base, base + 4*n))
        e(f"v_or3_b32 v{acc}, v{regs[0]}, v{regs[1]}, v{regs[2]}")
        regs = regs[3:]
        while len(regs) >= 2:
            e(f"v_or3_b32 v{acc}, v{acc}, v{regs[0]}, v{regs[1]}"); regs = regs[2:]
        if regs: e(f"v_or_b32 v{acc}, v{acc}, v{regs[0]}")
        e(f"v_and_b32 v{acc}, v11, v{acc}")
        e(f"v_cmp_ne_u32 vcc, 0, v{acc}")
    def poll_end(top, out):
        e(f"s_cbranch_vccz {out}")
        e("s_sub_u32 s49, s49, 1"); e(f"s_cbranch_scc0 {top}")
        e("s_mov_b32 s49, 0")
        e(f"{out}:")
    def rscat(bs):
        for b in bs: e(f"v_permlane32_swap_b32 v{b}, v{b+2}"); e(f"v_permlane32_swap_b32 v{b+1}, v{b+3}")
        for b in bs: e(f"v_pk_add_f32 v[{b}:{b+1}], v[{b}:{b+1}], v[{b+2}:{b+3}]")
        for b in bs: e(f"v_permlane16_swap_b32 v{b}, v{b+1}")
        for b in bs: e(f"v_add_f32 v{b}, v{b}, v{b+1}")
    def tile_addrs():
        c("v6 tile read address, v7 activation read address, v8 / v15 where stage 1 / stage 3 results go")
        e("v_mov_b32 v11, 0xff")
        e("v_mov_b32 v98, 0"); e("v_mov_b32 v99, 0"); e("v_mov_b32 v118, 0"); e("v_mov_b32 v119, 0")
        e(f"s_mov_b32 s49, {spin}")
        e("v_lshrrev_b32 v6, 2, v1"); e("v_mul_u32_u24 v6, 288, v6"); e("v_lshl_add_u32 v6, v12, 3, v6")
        e("s_lshl_b32 s50, s3, 5"); e("v_add_u32 v6, s50, v6")
        e(f"v_mul_u32_u24 v7, {PITCH}, v12"); e("v_lshl_add_u32 v7, v14, 4, v7")
        e("s_lshl_b32 s50, s6, 5"); e("s_add_u32 s50, s50, s7")
        e("s_mul_i32 s51, s50, 9216"); e("s_lshl_b32 s52, s3, 10"); e("s_add_u32 s51, s51, s52")
        e("s_lshl_b32 s52, s28, 8"); e("s_add_u32 s51, s51, s52"); e(f"s_add_u32 s51, s51, {X1}")
        e("v_lshlrev_b32 v8, 4, v14"); e("v_lshl_add_u32 v15, v12, 6, v8"); e("v_add_u32 v8, s51, v15")
        e("s_mul_i32 s51, s28, 9"); e("s_add_u32 s51, s51, s3"); e(f"s_mul_i32 s51, s51, {FXP}"); e("s_lshl_b32 s50, s50, 8")
        e("s_add_u32 s51, s51, s50"); e(f"s_add_u32 s51, s51, {FX}"); e("v_add_u32 v15, s51, v15")
    def h_addrs():
        c("type 0: v128 this wave's 16 columns of the hidden partials, v129 where their activations go in LDS")
        e("s_mul_i32 s50, s7, 9"); e("s_add_u32 s50, s50, s3"); e("s_lshl_b32 s50, s50, 10"); e(f"s_add_u32 s50, s50, {X1}")
        e("v_lshl_add_u32 v128, v1, 4, s50")
        e("s_lshr_b32 s50, s3, 1"); e("s_lshl_b32 s50, s50, 6"); e("s_and_b32 s54, s3, 1"); e("s_lshl3_add_u32 s50, s54, s50")
        e("v_bfe_u32 v129, v1, 2, 2"); e(f"v_mul_u32_u24 v129, {PITCH}, v129"); e("v_lshl_add_u32 v129, v12, 4, v129")
        e("v_lshl_add_u32 v129, v14, 1, v129"); e("v_add_u32 v129, s50, v129")
    def helper():
        if help is None: return
        heavy = [k for k in range(32) if any(((288*k)//128 + i) % 8 == 3 for i in range(3))]
        tab = 0
        for x in range(8):
            hs = [k & 3 for k in heavy if k >> 2 == x]
            assert len(hs) == 1 + (x & 1)
            for u, k in enumerate(hs): tab |= k << (4*x + 2*u)
        c("type 1 workgroups with a cheap first tile pull 81 lines of w2 into L2 for a type 0 neighbour with a costly one")
        e("s_and_b32 s50, s7, 3"); e("s_cmp_eq_u32 s50, 1"); e("s_cselect_b32 s50, 0, s6"); e("s_cmp_eq_u32 s50, 0"); e("s_cbranch_scc1 L_nohelp")
        e("s_and_b32 s50, s7, 15"); e("s_lshl_b32 s50, s50, 1"); e(f"s_lshr_b32 s50, {hex(tab)}, s50"); e("s_and_b32 s50, s50, 3")
        e("s_and_b32 s54, s2, 7"); e("s_lshl2_add_u32 s50, s54, s50"); e("s_mul_i32 s50, s50, 165888")
        e("s_lshr_b32 s54, s4, 3"); e("s_lshl2_add_u32 s54, s54, s28"); e("s_mul_i32 s54, s54, 10368"); e("s_add_u32 s50, s50, s54")
        if help: e(f"s_add_u32 s50, s50, {help*1152}")
        e("v_lshl_add_u32 v22, v1, 7, s50"); e("v_min_u32 v23, 16, v1"); e("v_lshl_add_u32 v23, v23, 7, s50"); e("v_add_u32 v23, 8192, v23")
        e(f"global_load_dword v22, v22, s[22:23] {hpol}"); e(f"global_load_dword v23, v23, s[22:23] {hpol}")
        e("L_nohelp:")
    def s4load(n):
        e("s_mov_b32 exec_hi, 0x003fffff")
        for t in range(n):
            e("buffer_load_dwordx4 v3, s[36:39], s58 offen nt lds")
            e("s_add_u32 m0, m0, 6912"); e("s_add_u32 s58, s58, 27648")
        e("s_mov_b32 exec_hi, -1")
    def kload(t, r0=0, r1=4):
        for r in range(r0, r1): e(f"global_load_dwordx4 v[{16+16*t+4*r}:{19+16*t+4*r}], v4, s[10:11] offset:{256*r} nt")
    def vload():
        for r in range(4): e(f"global_load_lds_dwordx4 v{4 if r & 1 else 5}, s[12:13] offset:{1024*r} nt")
    def oproc():
        e("v_pk_mul_f32 v[20:21], v[20:21], v[28:29]"); e("v_pk_mul_f32 v[22:23], v[22:23], v[28:29]")
        for sh in (8, 4):
            for r in range(4): e(f"v_add_f32_dpp v{20+r}, v{20+r}, v{20+r} row_ror:{sh} {DPP}")
        e("v_cvt_pk_bf16_f32 v20, v20, v21"); e("v_cvt_pk_bf16_f32 v21, v22, v23")
        e(f"ds_write_b64 v129, v[20:21] offset:{ACT}")
        e("s_waitcnt lgkmcnt(0)")

    e(f"{KN}:")
    stamp(0)
    e("s_load_dwordx16 s[8:23], s[0:1], 0")
    e("s_load_dwordx2 s[24:25], s[0:1], 64     ; out")
    e("s_load_dwordx2 s[26:27], s[0:1], 80     ; ws")
    e("s_load_dwordx2 s[30:31], s[0:1], 72     ; debug")
    e("s_cmp_ge_u32 s2, 256"); e("s_cbranch_scc1 L_end")
    e("v_lshrrev_b32 v2, 6, v0"); e("v_and_b32 v1, 63, v0")
    e("v_readfirstlane_b32 s3, v2")
    e("s_and_b32 s4, s2, 15                    ; hkv")
    e("s_lshr_b32 s5, s2, 4                    ; j")
    e("s_lshr_b32 s6, s2, 7                    ; type")
    e("s_bfe_u32 s29, s2, 0x10006")
    e("s_lshl1_add_u32 s7, s4, s29")
    e("s_and_b32 s28, s5, 3")
    e("s_getreg_b32 s40, hwreg(HW_REG_XCC_ID, 0, 4)"); e("s_bitset1_b32 s40, 7")
    e("v_lshlrev_b32 v13, 4, v1")
    e("s_sub_u32 s3, s3, 1"); e("s_cbranch_scc0 L_stream")
    c("---- service wave, head: pull the code into L2, post the XCD id, fetch x into LDS ----")
    e("s_mov_b32 s3, 8")
    e("s_getpc_b64 s[52:53]"); e("L_pc:")
    e("v_lshlrev_b32 v4, 7, v1"); e("v_min_u32 v4, L_end-L_pc, v4")
    e("global_load_dword v5, v4, s[52:53]")
    e(f"s_mov_b32 m0, {XR}"); e("v_add_u32 v4, 4096, v13")
    e("s_lshl4_add_u32 s53, s4, s5"); e("v_mov_b32 v7, s53"); e("v_mov_b32 v6, s40")
    e("s_and_b32 s53, s53, 0xc0"); e("s_xor_b32 s53, s53, 64"); e("s_mov_b64 exec, 1")
    e("s_waitcnt lgkmcnt(0)")
    e(f"s_load_dword s48, s[26:27], {EPOCH}")
    e("s_load_dword s42, s[30:31], s53")
    e("global_store_byte v7, v6, s[30:31]"); e("s_mov_b64 exec, -1")
    for i in range(4): e(f"global_load_lds_dwordx4 v13, s[8:9] offset:{1024*i}")
    e(f"s_mov_b32 m0, {XR + 4096}"); e("s_mov_b32 exec_hi, 0")
    e("global_load_lds_dwordx4 v4, s[8:9]")
    e("s_mov_b32 exec_hi, -1")
    e("s_branch L_service")

    e("L_stream:")
    c("---- stream waves: first tile -> LDS, 3 rows of 288 bytes pitch per load ----")
    e("s_and_b32 s50, s2, 7"); e("s_lshr_b32 s51, s4, 3"); e("s_lshl1_add_u32 s50, s50, s51"); e("s_lshl1_add_u32 s50, s50, s29")
    e("s_cmp_lg_u32 s6, 0"); e("s_cselect_b32 s43, s7, s50")
    e("s_sub_u32 s51, 9, s6")
    e("s_mul_i32 s59, s51, 18432")
    e("s_lshl_b32 s50, s51, 10")
    e("s_mul_i32 s34, s51, 589824")
    e("s_lshl_b32 s51, s51, 5")
    e("s_mov_b32 s35, 0x20000")
    e("s_mul_i32 s51, s51, s43")
    e("s_mul_i32 s52, s28, 48"); e("s_add_u32 s52, s52, s3"); e("s_mul_i32 s52, s52, s50"); e("s_mul_i32 s52, s52, 3"); e("s_add_u32 s42, s51, s52")
    e("v_mul_u32_u24 v9, 57, v1"); e("v_lshrrev_b32 v9, 10, v9                ; lane / 18")
    e("v_mul_u32_u24 v10, 288, v9"); e("v_sub_u32 v10, v13, v10                 ; (lane % 18) * 16")
    e("v_mad_u32_u24 v2, v9, s50, v10")
    e("s_mul_i32 s56, s50, 24")
    e("s_mul_i32 s57, s3, 864")
    e(f"s_add_u32 m0, s57, {S1T}")
    e("s_cmp_lg_u32 s6, 0")
    e("s_cselect_b32 s55, 0, 0x0030000c"); e("s_or_b32 exec_hi, s55, 0x000ffff3")
    e("s_cmp_lg_u32 s6, 0")
    e("s_cselect_b32 exec_lo, 0xfffcffff, -1")
    e("s_waitcnt lgkmcnt(0)")
    e("s_cselect_b64 s[32:33], s[14:15], s[20:21]")
    e("s_cselect_b64 s[36:37], s[16:17], s[22:23]")
    stamp(1)
    for t in range(6):
        e("buffer_load_dwordx4 v2, s[32:35], s42 offen nt lds")
        if t < 5: e("s_add_u32 m0, m0, 6912"); e("s_add_u32 s42, s42, s56")
    e("s_mov_b64 exec, -1")
    e(f"s_load_dword s48, s[26:27], {EPOCH}")
    c("K / V: two 16-key blocks per wave; the block order is rotated per workgroup to spread the HBM stacks")
    e("s_lshr_b32 s50, s5, 2"); e("s_lshl_b32 s50, s50, 24"); e("s_lshl_b32 s51, s4, 20"); e("s_add_u32 s50, s50, s51")
    e("s_lshl_b32 s51, s28, 16"); e("s_add_u32 s50, s50, s51")
    e("s_xor_b32 s51, s5, s4"); e("s_xor_b32 s51, s51, s3"); e("s_lshl_b32 s51, s51, 12"); e("s_add_u32 s50, s50, s51")
    e("s_add_u32 s50, s50, 786432")
    e("v_and_b32 v12, 3, v1"); e("v_lshrrev_b32 v14, 4, v1")
    e("v_lshlrev_b32 v5, 5, v14"); e("v_xor_b32 v5, v5, v13"); e("v_add_u32 v5, s50, v5")
    e("v_bfe_u32 v13, v1, 2, 2")
    e("v_lshl_add_u32 v4, v13, 10, s50"); e("v_lshl_add_u32 v4, v14, 6, v4"); e("v_lshl_add_u32 v4, v12, 4, v4           ; K source")
    e("s_mul_i32 s51, s59, s43"); e("s_add_u32 s38, s51, s59"); e("s_mov_b32 s39, 0x20000")
    e("s_mul_i32 s52, s28, 288"); e("s_add_u32 s51, s51, s52"); e("s_mul_i32 s52, s3, 3456"); e("s_add_u32 s58, s51, s52")
    e("v_mul_u32_u24 v3, 1152, v9"); e("v_add_u32 v3, v3, v10")
    tile_addrs()
    if hold:
        c("s59 != 0: type 1 workgroups with a cheap first tile hold K loads back until their q partials are out")
        if hcls == 1: e("s_and_b32 s59, s7, 3"); e("s_cmp_eq_u32 s59, 1"); e("s_cselect_b32 s59, 0, s6")
        else: e("s_mov_b32 s59, s6")
    if k0bar: e("s_waitcnt vmcnt(2)")
    else:
        if xearly: e("s_waitcnt vmcnt(2)"); xcd_load()
        e(f"s_waitcnt vmcnt({k0w})")
        kload(0, 0, 4 - hold)
    if k0bar or not xearly: xcd_load()
    if hold:
        e("s_cmp_lg_u32 s59, 0"); e("s_cbranch_scc1 L_k0s")
        kload(0, 4 - hold, 4)
        e("s_branch L_k0d"); e("L_k0s:"); e(f"s_waitcnt vmcnt({4 - hold})"); e("L_k0d:")
    elif not k0bar: e("v_xor_b32 v4, 0x8000, v4")
    e("s_waitcnt lgkmcnt(0)")
    tags(); xcd_flag()
    if k0bar or k0w: e(f"s_waitcnt vmcnt({0 if k0bar else 4})")
    stamp(2)
    bar("B1: xn and the first tile are in LDS")
    if k0bar: kload(0); e("v_xor_b32 v4, 0x8000, v4")
    stamp(3)
    stage1()
    e(f"v_add_u32 v6, {S4T}, v6")
    bar("B1b: stage 1 stores are issued")
    stamp(4)
    if hold:
        e("s_cmp_eq_u32 s59, 0"); e("s_cbranch_scc1 L_k0l")
        kload(0, 4 - hold, 4); e(f"s_waitcnt vmcnt({hw})")
        e("L_k0l:")
        e("v_xor_b32 v4, 0x8000, v4")
    e(f"s_waitcnt vmcnt({wK1})")
    kload(1)
    c("v8 / v9 q fragments for block 0 / 1 (zeros in the other block's columns), v2 P slot, v10 max slot")
    e("v_bfe_u32 v10, v1, 2, 1")
    e("v_mul_u32_u24 v9, 272, v10"); e("v_lshl_add_u32 v9, v14, 6, v9"); e("v_lshl_add_u32 v9, v12, 4, v9")
    e("v_and_b32 v2, 8, v1"); e("v_cmp_eq_u32 vcc, 0, v2"); e(f"v_mov_b32 v4, {QZ - QL}")
    e("v_cndmask_b32 v8, v4, v9, vcc"); e("v_cndmask_b32 v9, v9, v4, vcc")
    e("s_lshr_b32 s50, s3, 1"); e("s_lshl_b32 s50, s50, 7"); e("s_and_b32 s51, s3, 1"); e("s_lshl3_add_u32 s50, s51, s50")
    e("v_lshl_add_u32 v2, v2, 6, s50"); e("v_lshl_add_u32 v2, v14, 5, v2"); e("v_lshl_add_u32 v2, v10, 4, v2")
    e("v_lshlrev_b32 v10, 2, v10")
    c("v124 V read address, v125 P read address, v126 where this wave's 16 columns of O go")
    e("v_lshrrev_b32 v124, 2, v1"); e("v_and_b32 v125, 7, v124"); e("v_xor_b32 v125, s3, v125")
    e("v_lshlrev_b32 v124, 8, v124"); e("v_lshl_add_u32 v124, v125, 5, v124"); e("v_lshl_add_u32 v124, v12, 3, v124"); e(f"v_add_u32 v124, {VL}, v124")
    e("v_and_b32 v126, 1, v1"); e("v_lshlrev_b32 v125, 5, v14"); e("v_lshl_add_u32 v125, v126, 4, v125")
    e("s_lshl4_add_u32 s50, s4, s5"); e("s_mul_i32 s50, s50, 1152"); e("s_lshl_b32 s51, s3, 6"); e("s_add_u32 s50, s50, s51"); e(f"s_add_u32 s50, s50, {OX}")
    e("v_lshl_add_u32 v126, v126, 9, s50"); e("v_lshl_add_u32 v126, v14, 4, v126")
    e("s_lshl_b32 s53, s3, 12"); e(f"s_add_u32 m0, s53, {VL}")
    e("v_xor_b32 v4, 0x80, v5")
    e(f"s_waitcnt vmcnt({wV0})")
    vload()
    e("s_add_u32 m0, m0, 32768")
    e("v_xor_b32 v5, 0x8000, v5"); e("v_xor_b32 v4, 0x8000, v4")
    c("type 1: wave = (batch, half of d), lane = (16 columns, chunk, 4 columns): v128 O, v127 (max, sum), v129 LDS slot")
    e("s_lshr_b32 s50, s3, 1"); e("s_and_b32 s51, s3, 1")
    e("s_lshl2_add_u32 s53, s4, s50"); e("s_mul_i32 s53, s53, 4608"); e(f"s_add_u32 s53, s53, {OX}")
    e("s_lshl4_add_u32 s54, s29, s53"); e("v_lshl_add_u32 v127, v13, 5, s54")
    e("s_cmp_eq_u32 s6, 0"); e("s_cbranch_scc1 L_addrA")
    e("s_lshl1_add_u32 s55, s29, s51"); e("s_lshl_b32 s55, s55, 8"); e("s_add_u32 s53, s53, s55")
    e("v_mul_u32_u24 v128, 1152, v13"); e("v_lshl_add_u32 v128, v14, 6, v128"); e("v_lshl_add_u32 v128, v12, 4, v128"); e("v_add_u32 v128, s53, v128")
    e(f"s_mul_i32 s50, s50, {PITCH}"); e("s_lshl_b32 s51, s51, 7"); e("s_add_u32 s50, s50, s51")
    e("v_lshrrev_b32 v13, 5, v1"); e("v_lshl_add_u32 v129, v13, 6, s50"); e("v_lshl_add_u32 v129, v12, 4, v129")
    e("v_and_b32 v13, 1, v14"); e("v_lshl_add_u32 v129, v13, 3, v129")
    e(f"s_waitcnt vmcnt({wV1})")
    e("s_branch L_v1")
    e("L_addrA:")
    h_addrs()
    e(f"s_waitcnt vmcnt({wV1})")
    e("global_load_dwordx4 v[100:103], v128, s[26:27] sc1")
    e("L_v1:")
    vload()
    e(f"s_add_u32 m0, s57, {S4T}")
    e(f"s_mov_b32 s54, {hex(f2u(128 ** -0.5))}"); e("s_mov_b32 s51, 0xffff0000"); e(f"s_mov_b32 s52, {hex(f2u(LOG2E))}")
    stamp(5)
    bar("B2: q is in LDS")
    stamp(6)
    c("scores: rows (key, quarter of d) x columns (block, head, quarter of d); the diagonal quarters are summed")
    e(f"ds_read_b128 v[48:51], v8 offset:{QL}"); e(f"ds_read_b128 v[52:55], v9 offset:{QL}")
    e("s_waitcnt lgkmcnt(1)")
    for r in range(4): mfma(56 + 4*r, 16 + 4*r, 48, True)
    e("s_waitcnt lgkmcnt(0)")
    for r in range(4): mfma(56 + 4*r, 32 + 4*r, 52, False)
    for q in (1, 2, 3):
        for r in range(4):
            e(f"v_add_f32_dpp v{72+r}, v{56+4*r+q}, v{56+4*r if q == 1 else 72+r} quad_perm:[{q},{q},{q},{q}] {DPP}")
    def rnd():
        for p in range(2): e(f"v_cvt_pk_bf16_f32 v{76+p}, v{72+2*p}, v{73+2*p}")
        for p in range(2):
            e(f"v_lshlrev_b32 v{72+2*p}, 16, v{76+p}"); e(f"v_and_b32 v{73+2*p}, s51, v{76+p}")
    c("bf16(bf16(q.k) * 128^-0.5), as the reference rounds them")
    rnd()
    for p in range(2): e(f"v_pk_mul_f32 v[{72+2*p}:{73+2*p}], v[{72+2*p}:{73+2*p}], s[54:55] op_sel_hi:[1,0]")
    rnd()
    e("v_max3_f32 v76, v72, v73, v74"); e("v_max_f32 v76, v76, v75")
    e("s_mov_b32 exec_lo, 0x11111111"); e("s_mov_b32 exec_hi, 0x11111111")
    e(f"ds_max_f32 v10, v76 offset:{MX}")
    e("s_waitcnt lgkmcnt(0)")
    bar("B2b: the chunk's maxima are in LDS")
    e(f"ds_read_b32 v56, v10 offset:{MX}")
    e("s_waitcnt lgkmcnt(0)")
    for p in range(2): e(f"v_pk_add_f32 v[{72+2*p}:{73+2*p}], v[{72+2*p}:{73+2*p}], v[56:57] op_sel_hi:[1,0] neg_lo:[0,1] neg_hi:[0,1]")
    for p in range(2): e(f"v_pk_mul_f32 v[{72+2*p}:{73+2*p}], v[{72+2*p}:{73+2*p}], s[52:53] op_sel_hi:[1,0]")
    for i in range(4): e(f"v_exp_f32 v{72+i}, v{72+i}")
    e("v_cvt_pk_bf16_f32 v76, v72, v73"); e("v_cvt_pk_bf16_f32 v77, v74, v75")
    e(f"ds_write_b64 v2, v[76:77] offset:{PL}")
    e("s_mov_b64 exec, -1")
    e("s_cmp_eq_u32 s6, 0")
    e("s_waitcnt vmcnt(5) lgkmcnt(0)")
    e("s_cbranch_scc1 L_b2c"); e("s_waitcnt vmcnt(4)"); e("L_b2c:")
    bar("B2c: P and the first half of V are in LDS")
    stamp(7)
    c("O[16 columns of this wave] over all 256 keys of the chunk")
    for a in range(4):
        e(f"ds_read_b128 v[{16+4*a}:{19+4*a}], v125 offset:{PL + 128*a}")
        for x in range(2): e(f"ds_read_b64_tr_b16 v[{48+4*a+2*x}:{49+4*a+2*x}], v124 offset:{(2*a+x)*4096}")
    for a in range(4):
        e(f"s_waitcnt lgkmcnt({9-3*a})"); mfma(120, 48 + 4*a, 16 + 4*a, a == 0)
    for a in range(4): e(f"ds_read_b128 v[{32+4*a}:{35+4*a}], v125 offset:{PL + 512 + 128*a}")
    if b2d: bar("B2d: the (max, sum) store is ahead of the tile loads")
    s4load(3)
    e("s_waitcnt vmcnt(3) lgkmcnt(0)")
    stamp(8)
    bar("B3: the second half of V is in LDS")
    for a in range(4):
        for x in range(2): e(f"ds_read_b64_tr_b16 v[{64+4*a+2*x}:{65+4*a+2*x}], v124 offset:{32768 + (2*a+x)*4096}")
    for a in range(4):
        e(f"s_waitcnt lgkmcnt({6-2*a})"); mfma(120, 64 + 4*a, 32 + 4*a, False)
    publish(126, "0x00030003", True)
    stamp(9)
    if not mlpre: bar("B3b: every O store is ahead of the remaining tile loads")
    e("s_cmp_eq_u32 s6, 0"); e("s_cbranch_scc1 L_tailA")
    c("---- type 1: merge the four chunks of every batch, then wo ----")
    e("global_load_dwordx4 v[24:27], v127, s[26:27] offset:1024 sc1")
    if mlpre: bar("B3b: every O store is ahead of the remaining tile loads")
    s4load(3)
    e("s_waitcnt vmcnt(3)")
    stamp(1)
    if not olate: e("global_load_dwordx4 v[20:23], v128, s[26:27] sc1")
    e("L_b3c:")
    bar("B3c: tile rows 0..71 are in LDS")
    tile_reads(0, 0, 4)
    e("s_cmp_eq_u32 s3, 8"); e("s_cbranch_scc1 L_b4")
    e("s_branch L_mchk")
    e("L_mpoll:")
    e("global_load_dwordx4 v[24:27], v127, s[26:27] offset:1024 sc1")
    e("s_waitcnt vmcnt(0)")
    e("L_mchk:")
    untag(24, 1, 28)
    poll_end("L_mpoll", "L_mgot")
    c("v28 = v29 = exp(m_c - M) / sum_c exp(m_c - M) l_c")
    e(f"v_max_f32_dpp v28, v24, v24 row_ror:4 {DPP}"); e(f"v_max_f32_dpp v28, v28, v28 row_ror:8 {DPP}")
    e("v_sub_f32 v28, v24, v28"); e("v_mul_f32 v28, s52, v28"); e("v_exp_f32 v28, v28")
    e("v_mul_f32 v25, v25, v28")
    e(f"v_add_f32_dpp v25, v25, v25 row_ror:8 {DPP}"); e(f"v_add_f32_dpp v25, v25, v25 row_ror:4 {DPP}")
    e("v_rcp_f32 v25, v25")
    e("v_mul_f32 v28, v28, v25"); e("v_mov_b32 v29, v28")
    if olate: e("global_load_dwordx4 v[20:23], v128, s[26:27] sc1")
    if stamps: e("s_waitcnt vmcnt(1)"); stamp(10)
    e("s_branch L_ochk")
    e("L_opoll:")
    e("global_load_dwordx4 v[20:23], v128, s[26:27] sc1")
    e("L_ochk:")
    e("s_waitcnt vmcnt(0)")
    untag(20, 1, 30)
    poll_end("L_opoll", "L_ogot")
    oproc()
    stamp(11)
    e("L_b4:")
    bar("B4: o and the whole second tile are in LDS")
    emk()
    stamp(12)
    e(f"ds_read_b128 v[100:103], v7 offset:{ACT}"); e(f"ds_read_b128 v[104:107], v7 offset:{ACT + 64}")
    for s in (2, 3):
        e(f"ds_read_b128 v[{100+4*s}:{103+4*s}], v7 offset:{ACT + 64*s}"); tile_reads(0, 2*s, 2*s + 2)
    for s, w in enumerate((7, 6, 3, 0)):
        e(f"s_waitcnt lgkmcnt({w})"); mfma(120, 80 + 4*s, 100 + 4*s, s == 0)
    e("L_pub:")
    publish(15, "0x000f000f", False)
    e("s_cmp_eq_u32 s3, 8"); e("s_cbranch_scc1 L_final")
    stamp(13)
    dump()
    e("s_endpgm")
    c("---- type 0: silu of the summed hidden partials, then w2 ----")
    e("L_tailA:")
    if mlpre: bar("B3b")
    s4load(3)
    e("s_branch L_hchk")
    e("L_hpoll:")
    e("global_load_dwordx4 v[100:103], v128, s[26:27] sc1")
    e("s_waitcnt vmcnt(0)")
    e("L_hchk:")
    untag(100, 1, 104)
    poll_end("L_hpoll", "L_hgot")
    rscat([100])
    e("v_cvt_pk_bf16_f32 v100, v100, v100"); e("v_and_b32 v100, 0xffff0000, v100")
    e(f"v_mul_f32 v101, {hex(f2u(-LOG2E))}, v100"); e("v_exp_f32 v101, v101"); e("v_add_f32 v101, 1.0, v101"); e("v_rcp_f32 v101, v101")
    e("v_mul_f32 v100, v100, v101"); e("v_cvt_pk_bf16_f32 v100, v100, v100")
    e(f"ds_write_b16 v129, v100 offset:{ACT}")
    e("s_waitcnt vmcnt(3) lgkmcnt(0)")
    stamp(1)
    bar("B3c: the activations and tile rows 0..71 are in LDS")
    act_reads(ACT, True)
    tile_reads(0, 0, 4)
    e("s_waitcnt lgkmcnt(0)")
    for s in range(2): mfma(120, 80 + 4*s, 100 + 4*s, s == 0)
    e("s_waitcnt vmcnt(0)")
    stamp(10)
    bar("B4a: the second tile is in LDS")
    emk()
    stamp(12)
    tile_reads(0, 4, 9)
    for s in range(2, 5):
        e(f"s_waitcnt lgkmcnt({max(7 - 2*s, 0)})"); mfma(120, 80 + 4*s, 100 + 4*s, False)
    e("s_branch L_pub")

    c("---- service wave ----")
    e("L_service:")
    e("v_lshrrev_b32 v14, 4, v1"); e("v_and_b32 v12, 3, v1"); e("v_and_b32 v13, 15, v1")
    e("v_mul_u32_u24 v2, 1152, v14"); e("v_lshl_add_u32 v2, v13, 3, v2")
    e("s_mul_i32 s50, s28, 288"); e("v_add_u32 v16, s50, v2")
    c("stage 4 role: s56 tile of 16 output columns (< 36), s57 batch; v3 byte offset of this lane's output")
    e("s_xor_b32 s50, s2, 0xe0")
    e("s_and_b32 s56, s50, 7"); e("s_lshr_b32 s51, s50, 5"); e("s_lshl3_add_u32 s56, s51, s56"); e("s_bfe_u32 s57, s50, 0x20003")
    e("s_mul_i32 s51, s57, 1152"); e("s_lshl_b32 s52, s56, 5"); e("s_add_u32 s51, s51, s52")
    e("v_lshl_add_u32 v3, v12, 3, s51"); e("v_lshl_add_u32 v3, v14, 1, v3")
    tile_addrs()
    e(f"ds_write_b64 v98, v[98:99] offset:{QZ}"); e(f"ds_write_b64 v98, v[98:99] offset:{QZ+8}")
    e("v_mov_b32 v20, 0xff800000"); e("v_mov_b32 v21, v20"); e(f"ds_write_b64 v98, v[20:21] offset:{MX}")
    e("s_mov_b32 s51, 0xffff0000")
    e(f"v_mul_u32_u24 v9, {PITCH}, v14"); e("v_bfe_u32 v10, v1, 3, 1"); e("v_lshl_add_u32 v9, v10, 6, v9"); e("v_lshl_add_u32 v9, v12, 4, v9")
    e("v_bfe_u32 v10, v1, 2, 1"); e("v_lshl_add_u32 v9, v10, 3, v9")
    stamp(1)
    e("s_waitcnt vmcnt(0)")
    stamp(2)
    c("layernorm: 16 lanes per batch row, two passes, rounded to bf16 where the reference rounds")
    for i in range(3): e(f"ds_read_b64 v[{34+2*i}:{35+2*i}], v16 offset:{XR + 128*i}")
    for i in range(9): e(f"ds_read_b64 v[{16+2*i}:{17+2*i}], v2 offset:{XR + 128*i}")
    e(f"ds_read_u16 v4, v3 offset:{XR}")
    e("s_waitcnt lgkmcnt(0)")
    for k in range(18):
        e(f"v_lshlrev_b32 v{40+2*k}, 16, v{16+k}"); e(f"v_and_b32 v{41+2*k}, s51, v{16+k}")
    e("v_pk_add_f32 v[76:77], v[40:41], v[42:43]"); e("v_pk_add_f32 v[78:79], v[44:45], v[46:47]")
    for k in range(4, 18): e(f"v_pk_add_f32 v[{76+2*(k&1)}:{77+2*(k&1)}], v[{76+2*(k&1)}:{77+2*(k&1)}], v[{40+2*k}:{41+2*k}]")
    def rowsum():
        e("v_pk_add_f32 v[76:77], v[76:77], v[78:79]"); e("v_add_f32 v76, v76, v77")
        for sh in (8, 4, 2, 1): e(f"v_add_f32_dpp v76, v76, v76 row_ror:{sh} {DPP}")
    rowsum()
    e(f"v_mul_f32 v16, {hex(f2u(-1.0/576))}, v76"); e("v_mov_b32 v17, v16")
    for k in range(18): e(f"v_pk_add_f32 v[{40+2*k}:{41+2*k}], v[{40+2*k}:{41+2*k}], v[16:17]")
    e("v_pk_mul_f32 v[76:77], v[40:41], v[40:41]"); e("v_pk_mul_f32 v[78:79], v[42:43], v[42:43]")
    for k in range(2, 18): e(f"v_pk_fma_f32 v[{76+2*(k&1)}:{77+2*(k&1)}], v[{40+2*k}:{41+2*k}], v[{40+2*k}:{41+2*k}], v[{76+2*(k&1)}:{77+2*(k&1)}]")
    rowsum()
    e(f"v_mul_f32 v18, {hex(f2u(1.0/576))}, v76")
    e("v_cvt_pk_bf16_f32 v18, v16, v18"); e("v_lshlrev_b32 v16, 16, v18"); e("v_and_b32 v18, s51, v18")
    e(f"v_add_f32 v18, {hex(f2u(1e-5))}, v18"); e("v_cvt_pk_bf16_f32 v18, v18, v18"); e("v_and_b32 v18, s51, v18")
    e("v_sqrt_f32 v18, v18"); e("v_mov_b32 v17, v16"); e("v_cvt_pk_bf16_f32 v18, v18, v18"); e("v_and_b32 v18, s51, v18")
    e("v_rcp_f32 v18, v18")
    e("v_mov_b32 v19, v18")
    for k in range(6):
        e(f"v_lshlrev_b32 v{40+2*k}, 16, v{34+k}"); e(f"v_and_b32 v{41+2*k}, s51, v{34+k}")
    for k in range(6): e(f"v_pk_add_f32 v[{40+2*k}:{41+2*k}], v[{40+2*k}:{41+2*k}], v[16:17]")
    for k in range(6): e(f"v_cvt_pk_bf16_f32 v{34+k}, v{40+2*k}, v{41+2*k}")
    for k in range(6):
        e(f"v_lshlrev_b32 v{40+2*k}, 16, v{34+k}"); e(f"v_and_b32 v{41+2*k}, s51, v{34+k}")
    for k in range(6): e(f"v_pk_mul_f32 v[{40+2*k}:{41+2*k}], v[{40+2*k}:{41+2*k}], v[18:19]")
    for k in range(6): e(f"v_cvt_pk_bf16_f32 v{34+k}, v{40+2*k}, v{41+2*k}")
    for i in range(3): e(f"ds_write_b64 v9, v[{34+2*i}:{35+2*i}] offset:{XN + 128*i}")
    c("v16..v19 the q partials of this batch, v9 where q goes in LDS")
    e("s_mul_i32 s50, s4, 18432"); e("s_lshr_b32 s52, s5, 2"); e("s_lshl_b32 s52, s52, 6"); e("s_add_u32 s50, s50, s52"); e(f"s_add_u32 s50, s50, {X1 + 32*9216}")
    e("v_bfe_u32 v10, v1, 2, 2")
    e("v_lshl_add_u32 v16, v10, 10, s50"); e("v_lshl_add_u32 v16, v14, 8, v16"); e("v_lshl_add_u32 v16, v12, 4, v16")
    e("v_add_u32 v17, 4096, v16"); e("v_add_u32 v18, 9216, v16"); e("v_add_u32 v19, 13312, v16")
    e("v_lshlrev_b32 v9, 3, v13"); e("v_lshl_add_u32 v9, v14, 1, v9")
    c("v5: lines that later hand-offs write (own and type 0 partner's O record, the partner's hidden partials); type 1")
    c("loads them once so that the later stores and gathers find them in L2")
    e("s_lshl4_add_u32 s50, s4, s5"); e("s_mul_i32 s53, s50, 1152"); e(f"s_add_u32 s53, s53, {OX}")
    e(f"s_sub_u32 s50, s53, {8*1152 + 9*128}"); e("v_mov_b32 v20, s50"); e("v_mov_b32 v21, s53")
    e("v_cmp_gt_u32 vcc, 9, v1"); e("v_cndmask_b32 v5, v20, v21, vcc"); e("v_lshl_add_u32 v5, v1, 7, v5")
    e("s_mul_i32 s50, s7, 9216"); e("s_lshl_b32 s52, s28, 8"); e("s_add_u32 s50, s50, s52"); e(f"s_add_u32 s50, s50, {X1 - 9*1024}")
    e("v_min_u32 v20, 35, v1"); e("v_lshrrev_b32 v21, 1, v20"); e("v_lshl_add_u32 v21, v21, 10, s50"); e("v_and_b32 v20, 1, v20"); e("v_lshl_add_u32 v21, v20, 7, v21")
    e("v_cmp_gt_u32 vcc, 18, v1"); e("v_cndmask_b32 v5, v21, v5, vcc")
    e("v_mul_lo_u32 v5, v5, s6")
    e("s_waitcnt lgkmcnt(0)")
    xcd_load()
    tags()
    e("s_waitcnt lgkmcnt(0)")
    xcd_flag()
    stamp(3)
    bar("B1")
    e("s_cmp_lg_u32 s6, 0"); e("s_cbranch_scc1 L_nos1")
    stage1()
    e("L_nos1:")
    bar("B1b")
    c("returns after this CU's stage 1 stores went out, so the q gather does not run into them")
    if hwhen == 2: helper()
    if ftouch == 2: ftch()
    e("global_load_dword v5, v5, s[26:27] sc1")
    e("s_waitcnt vmcnt(0)")
    stamp(4)
    e("L_qpoll:")
    for i in range(4): e(f"global_load_dwordx4 v[{60+4*i}:{63+4*i}], v{16+i}, s[26:27] sc1")
    e("s_waitcnt vmcnt(0)")
    untag(60, 4, 76)
    poll_end("L_qpoll", "L_qgot")
    stamp(5)
    rscat([60, 64, 68, 72])
    for i in range(4): e(f"v_cvt_pk_bf16_f32 v{60+4*i}, v{60+4*i}, v{60+4*i}")
    for i in range(4): e(f"ds_write_b16 v9, v{60+4*i} offset:{QL + (i>>1)*272 + (i&1)*128}")
    if ftouch == 1: ftch()
    h_addrs()
    e("s_cmp_lg_u32 s6, 0"); e("s_cbranch_scc1 L_noh")
    e("global_load_dwordx4 v[100:103], v128, s[26:27] sc1")
    e("L_noh:")
    if hwhen == 0: helper()
    e("s_waitcnt lgkmcnt(0)")
    stamp(6)
    bar("B2")
    e(f"s_mov_b32 s52, {hex(f2u(-LOG2E))}")
    e("v_and_b32 v17, 1, v1")
    e("s_mul_i32 s50, s28, 1120"); e("s_sub_u32 s53, s53, s50"); e("v_lshl_add_u32 v19, v17, 4, s53")
    e("v_lshlrev_b32 v16, 5, v14"); e("v_lshl_add_u32 v16, v17, 4, v16")
    e("v_lshlrev_b32 v17, 2, v17")
    for r in range(4): e(f"v_mov_b32 v{56+r}, 0x3f803f80")
    e(f"v_add_u32 v6, {S4T}, v6")
    c("v124..v127 the 64 partials of this workgroup's outputs; v8 / v9 its byte and its group's bytes in d_debug")
    e("s_lshl4_add_u32 s50, s4, s5"); e("v_mov_b32 v8, s50"); e("s_andn2_b32 s50, s50, 15"); e("v_or_b32 v9, s50, v13"); e("v_mov_b32 v10, 0x40")
    e(f"s_mul_i32 s50, s56, {FXP}"); e("s_lshl_b32 s53, s57, 6"); e("s_add_u32 s50, s50, s53"); e(f"s_add_u32 s50, s50, {FX}")
    e("v_lshrrev_b32 v124, 2, v1"); e("v_lshl_add_u32 v124, v124, 8, s50"); e("v_lshl_add_u32 v124, v12, 4, v124")
    e("v_add_u32 v125, 4096, v124"); e("v_add_u32 v126, 8192, v124"); e("v_add_u32 v127, 12288, v124")
    e("v_lshlrev_b32 v4, 16, v4")
    e("s_and_b32 s40, s40, 0xff"); e(f"s_movk_i32 s41, {4096 if gd else 0}")
    if hwhen == 1: helper()
    bar("B2b")
    bar("B2c")
    c("row sums of P (ones @ P) and the maxima -> the (max, sum) line of the O record")
    e(f"ds_read_b32 v60, v17 offset:{MX}")
    for k in range(8): e(f"ds_read_b128 v[{64+4*k}:{67+4*k}], v16 offset:{PL + 128*k}")
    for k in range(8):
        e(f"s_waitcnt lgkmcnt({7-k})"); mfma(120, 56, 64 + 4*k, k == 0)
    e("v_bfi_b32 v62, v11, s46, v60"); e("v_bfi_b32 v60, v11, s44, v60")
    e("v_bfi_b32 v61, v11, s45, v120"); e("v_bfi_b32 v63, v11, s47, v120")
    e("s_mov_b64 exec, 3")
    e("s_cmp_lg_u32 s60, 0")
    gstore("global_store_dwordx4 v19, v[60:63], s[26:27] offset:1024")
    e("s_mov_b64 exec, -1")
    stamp(7)
    if b2d: bar("B2d")
    bar("B3")
    bar("B3b")
    stamp(8)
    e("s_waitcnt vmcnt(1)")
    e("s_cmp_eq_u32 s6, 0"); e("s_cbranch_scc1 L_hchk")
    e("s_branch L_b3c")
    c("---- stage 4 ----")
    e("L_final:")
    stamp(11)
    if not emark: e("s_mov_b64 exec, 1"); e("global_store_byte v8, v10, s[30:31]"); e("s_mov_b64 exec, -1")
    e("s_cmp_ge_u32 s56, 36"); e("s_cbranch_scc1 L_fin")
    c("reading a line before it is written slows its writer down: hold off while neighbours on this XCD are still busy")
    e("L_gp:")
    e("global_load_ubyte v20, v9, s[30:31] sc1"); e("s_waitcnt vmcnt(0)")
    e("v_cmp_eq_u32 vcc, s40, v20")
    e("s_cbranch_vccz L_fpoll"); e("s_sub_u32 s41, s41, 1"); e("s_cbranch_scc0 L_gp")
    def ld(i): e(f"global_load_dwordx4 v[{32+4*i}:{35+4*i}], v{124+i}, s[26:27] sc1")
    def red(b, src):
        e(f"v_pk_add_f32 v[{b}:{b+1}], v[{src}:{src+1}], v[{src+4}:{src+5}]"); e(f"v_pk_add_f32 v[{b+2}:{b+3}], v[{src+2}:{src+3}], v[{src+6}:{src+7}]")
    def red2(bs):
        rscat(bs)
        for sh in (4, 8):
            for b in bs: e(f"v_add_f32_dpp v{b}, v{b}, v{b} row_ror:{sh} {DPP}")
    e("L_fpoll:")
    for i in (2, 3, 0, 1): ld(i)
    e("s_waitcnt vmcnt(2)")
    untag(40, 2, 19); red(28, 40)
    poll_end("L_fpoll", "L_sgot")
    e("s_waitcnt vmcnt(0)")
    untag(32, 2, 19); red(20, 32)
    e("s_cbranch_vccz L_fgot")
    ld(0); ld(1)
    red2([28])
    e("s_branch L_fchk")
    e("L_fp2:")
    ld(0); ld(1)
    e("L_fchk:")
    e("s_waitcnt vmcnt(0)")
    untag(32, 2, 19); red(20, 32)
    poll_end("L_fp2", "L_fg2")
    stamp(12)
    e("s_nop 0")
    red2([20])
    e("s_branch L_fmath")
    e("L_fgot:")
    stamp(12)
    e("s_nop 0")
    red2([20, 28])
    e("L_fmath:")
    c("out = bf16(x + bf16(s * bf16(silu(f))))")
    e("v_cvt_pk_bf16_f32 v20, v28, v20"); e("v_and_b32 v21, s51, v20"); e("v_lshlrev_b32 v20, 16, v20")
    e("v_mul_f32 v22, s52, v21"); e("v_exp_f32 v22, v22"); e("v_add_f32 v22, 1.0, v22"); e("v_rcp_f32 v22, v22"); e("v_mul_f32 v21, v21, v22")
    e("v_cvt_pk_bf16_f32 v21, v21, v21"); e("v_and_b32 v21, s51, v21")
    e("v_mul_f32 v20, v20, v21"); e("v_cvt_pk_bf16_f32 v20, v20, v20"); e("v_and_b32 v20, s51, v20")
    e("v_add_f32 v20, v4, v20"); e("v_cvt_pk_bf16_f32 v20, v20, v20")
    e("s_mov_b32 exec_lo, 0x000f000f"); e("s_mov_b32 exec_hi, 0x000f000f")
    e("global_store_short v3, v20, s[24:25]")
    c("every workgroup has read the old tag word by now (all of them fed these partials): leave this launch's tag in it")
    e(f"s_cmp_lg_u32 s2, {diagwg}"); e("s_cbranch_scc1 L_fin")
    e("s_mov_b64 exec, 1"); e("v_mov_b32 v22, s48")
    e(f"global_store_dword v98, v22, s[26:27] offset:{EPOCH}")
    if diag is not None:
        e("s_memrealtime s[60:61]"); e("s_waitcnt lgkmcnt(0)")
        e(f"s_sub_u32 s62, s{64+2*diag}, s64"); e("s_lshl_b32 s62, s62, 3"); e("s_min_u32 s62, s62, 100000")
        e("L_diag:"); e("s_memrealtime s[50:51]"); e("s_waitcnt lgkmcnt(0)"); e("s_sub_u32 s50, s50, s60"); e("s_cmp_lt_u32 s50, s62"); e("s_cbranch_scc1 L_diag")
    e("L_fin:")
    stamp(13)
    dump()
    e("L_end:")
    e("s_endpgm")
    body = pad(L)
    out = HEADER + f"; @launch grid=(256,1,1) block=(576,1,1) lds={LDS_END}\n;\n" + DOC
    out += '.amdgcn_target "amdgcn-amd-amdhsa--gfx950"\n.text\n' + f".globl {KN}\n"
    if align: out += "; never executed: places the entry at the start of a 4 KiB page, so the stream waves' code sits in one page\n.p2align 12\n.fill 832, 4, 0xbf800000\n"
    out += f".p2align 8\n.type {KN},@function\n"
    out += "\n".join(x if x.endswith(":") else "    " + x for x in body) + "\n"
    out += f""".section .rodata,"a"
.p2align 6
.amdhsa_kernel {KN}
  .amdhsa_next_free_vgpr 136
  .amdhsa_next_free_sgpr {96 if (stamps or diag is not None) else 64}
  .amdhsa_accum_offset 136
  .amdhsa_group_segment_fixed_size 0
  .amdhsa_kernarg_size 88
  .amdhsa_user_sgpr_count 2
  .amdhsa_user_sgpr_kernarg_segment_ptr 1
  .amdhsa_system_sgpr_workgroup_id_x 1
  .amdhsa_float_denorm_mode_32 3
.end_amdhsa_kernel
"""
    return out
if __name__ == "__main__":
    open(sys.argv[1] if len(sys.argv) > 1 else f"cdna_kernels/{NAME}.s", "w").write(gen())
```
